```python
import torch

def _softmax(x, axis=-1):
    return torch.softmax(x, dim=axis)
def _gelu(x):
    return torch.nn.functional.gelu(x, approximate="tanh")
def _silu(x):
    return torch.nn.functional.silu(x)
def _sigmoid(x):
    return torch.sigmoid(x)
def _layernorm(x, axis=-1, eps=1e-5):
    m = x.mean(dim=axis, keepdim=True)
    v = x.var(dim=axis, keepdim=True, unbiased=False)
    return (x - m) / torch.sqrt(v + eps)
def _scatter_add(tgt, idx, src, axis=0):
    return tgt.clone().index_add_(axis, idx, src)
def _segment_sum(src, seg, n):
    out = torch.zeros((n,) + src.shape[1:], dtype=src.dtype)
    return out.index_add_(0, seg, src)
def _pad(x, pw):
    flat = tuple(v for pair in reversed(pw) for v in pair)
    return torch.nn.functional.pad(x, flat)

kernel_name = 'standalone__kv_cache_quant_int4_int2_kv_with_per_channel_or_per_token_scales__sampling'

def setup_inputs():

    _w = (lambda a: (lambda t: t.to(torch.bfloat16) if t.is_floating_point() else t)(torch.as_tensor(a)))
    B = 8
    Sq = 4
    Skv = 2048
    Hq = 32
    Hkv = 16
    Dh = 128
    bits = 8
    G = 128
    if G <= 0 or G >= Skv:
        G = max(1, Skv // 2)
    Skv = (Skv // G) * G
    ngk = Skv // G
    qmax = (1 << bits) - 1
    return {
        "q": _w((lambda *s: torch.randn(*s, dtype=torch.bfloat16) * 0.4)(B, Hq, Sq, Dh)),
        "qk": _w(torch.randint(0, qmax + 1, (B, Hkv, Skv, Dh)).to(torch.int32)),
        "qv": _w(torch.randint(0, qmax + 1, (B, Hkv, Skv, Dh)).to(torch.int32)),
        "k_scales": _w(torch.abs((lambda *s: torch.randn(*s, dtype=torch.bfloat16) * 0.4)(B, Hkv, ngk, Dh)) * 0.05 + 0.02),
        "k_zeros": _w((lambda *s: torch.randn(*s, dtype=torch.bfloat16) * 0.4)(B, Hkv, ngk, Dh) + float(qmax) / 2.0),
        "v_scales": _w(torch.abs((lambda *s: torch.randn(*s, dtype=torch.bfloat16) * 0.05)(B, Hkv, Skv, 1)) * 0.05 + 0.02),
        "v_zeros": _w((lambda *s: torch.randn(*s, dtype=torch.bfloat16) * 0.05)(B, Hkv, Skv, 1) + float(qmax) / 2.0),
    }

def reference(q, qk, qv, k_scales, k_zeros, v_scales, v_zeros):
    B, Hq, Sq, Dh = q.shape
    Hkv, Skv = qk.shape[1], qk.shape[2]
    ngk = k_scales.shape[2]
    G = Skv // ngk
    ks = (lambda x, n, axis: torch.repeat_interleave(x, n, dim=axis))(k_scales, G, axis=2)
    kz = (lambda x, n, axis: torch.repeat_interleave(x, n, dim=axis))(k_zeros, G, axis=2)
    k = ((lambda x, dt: x.to(dt))(qk, q.dtype) - kz) * ks
    v = ((lambda x, dt: x.to(dt))(qv, q.dtype) - v_zeros) * v_scales
    rep = Hq // Hkv
    if rep > 1:
        k = (lambda x, n, axis: torch.repeat_interleave(x, n, dim=axis))(k, rep, axis=1)
        v = (lambda x, n, axis: torch.repeat_interleave(x, n, dim=axis))(v, rep, axis=1)
    scale = float(Dh) ** -0.5
    logits = torch.einsum("bhqd,bhkd->bhqk", q, k) * scale
    p = _softmax(logits, axis=-1)
    o = torch.einsum("bhqk,bhkd->bhqd", p, v)
    return o
```

```python
import re
TRANS = ("v_exp_f32", "v_log_f32", "v_rcp_f32", "v_rsq_f32", "v_sqrt_f32", "v_sin_f32", "v_cos_f32")
def regs_of(tok):
    tok = tok.strip()
    tok = tok.lstrip("-")
    m = re.fullmatch(r"abs\((.*)\)", tok)
    if m: tok = m.group(1)
    m = re.fullmatch(r"([vsa])(\d+)", tok)
    if m: return [(m.group(1), int(m.group(2)))]
    m = re.fullmatch(r"([vsa])\[(\d+):(\d+)\]", tok)
    if m: return [(m.group(1), i) for i in range(int(m.group(2)), int(m.group(3)) + 1)]
    if tok == "vcc": return [("s", 106), ("s", 107)]
    if tok == "exec": return [("s", 126), ("s", 127)]
    if tok == "m0": return [("s", 124)]
    return []
class Emitter:
    def __init__(self):
        self.lines = []
        self.t = 0
        self.vw = {}
        self.mw = {}
        self.mc = {}
        self.sw = {}
        self.st = {}
        self.m0w = -100
    def raw(self, s):
        self.lines.append(s)
    def label(self, l):
        self.lines.append(l + ":")
    def flush_hazards(self):
        self.nop(20)
    def nop(self, n):
        while n > 0:
            k = min(n, 16)
            self.lines.append(f"  s_nop {k-1}")
            self.t += k
            n -= k
    def __call__(self, s):
        for l in s.strip().split("\n"):
            l = l.strip()
            if l: self.ins(l)
    def ins(self, l):
        code = l.split(";")[0].strip()
        parts = code.split(None, 1)
        mn = parts[0]
        rest = parts[1] if len(parts) > 1 else ""
        ops = [o.strip() for o in re.split(r",(?![^\[]*\])", rest)] if rest else []
        if ops:
            last = ops[-1].split()
            mods = last[1:]
            ops[-1] = last[0] if last else ""
        else:
            mods = []
        is_mfma = mn.startswith("v_mfma")
        is_valu = mn.startswith("v_") and not is_mfma
        is_vmem = mn.startswith(("buffer_", "global_"))
        is_ds = mn.startswith("ds_")
        is_dpp = mn.endswith("_dpp") or any(m.startswith(("row_", "quad_perm", "wave_")) for m in mods)
        is_perml = mn.startswith("v_permlane")
        is_rdl = mn.startswith(("v_readlane", "v_readfirstlane"))
        w, r = [], []
        if is_valu or is_mfma:
            nd = 1
            if mn.startswith(("v_add_co", "v_addc_co", "v_sub_co", "v_subb_co", "v_div_scale")): nd = 2
            for o in ops[:nd]: w += regs_of(o)
            for o in ops[nd:]: r += regs_of(o)
            if mn.startswith(("v_fmac", "v_pk_fmac", "v_dot2c")): r += regs_of(ops[0])
            if is_perml:
                w = regs_of(ops[0]) + regs_of(ops[1]); r = list(w)
            if mn.startswith("v_cndmask") and len(ops) == 3: r += regs_of("vcc")
        elif is_vmem:
            if "load" in mn and "lds" not in mods:
                w += regs_of(ops[0])
                for o in ops[1:]: r += regs_of(o)
            elif "atomic" in mn:
                for o in ops: r += regs_of(o)
                if "sc0" in mods: w += regs_of(ops[0])
            else:
                for o in ops: r += regs_of(o)
        elif is_ds:
            if mn.startswith(("ds_read", "ds_bpermute", "ds_permute", "ds_swizzle")):
                w += regs_of(ops[0])
                for o in ops[1:]: r += regs_of(o)
            else:
                for o in ops: r += regs_of(o)
        need = 0
        def req(t0, n):
            nonlocal need
            need = max(need, n - (self.t - t0 - 1))
        for (k, i) in r:
            if k in "va":
                key = (k, i)
                if key in self.vw:
                    t0, kind = self.vw[key]
                    if is_mfma: req(t0, 2)
                    if is_dpp and is_valu: req(t0, 2)
                    if is_perml: req(t0, 2)
                    if is_rdl: req(t0, 1)
                    if kind == "trans" and (is_valu or is_mfma) and mn not in TRANS: req(t0, 1)
                    if kind == "trans" and (is_vmem or is_ds): req(t0, 1)
                if key in self.mw:
                    t0, p, dt = self.mw[key]
                    tbl_rw = {2: 5, 4: 8, 8: 12, 16: 20}[p]
                    if is_mfma:
                        srcc = regs_of(ops[3])
                        ab = regs_of(ops[1]) + regs_of(ops[2])
                        if key in ab: req(t0, tbl_rw)
                        if key in srcc:
                            if tuple(srcc) == dt: req(t0, 2 if p == 2 else 0)
                            else: req(t0, {2: 4, 4: 6, 8: 10, 16: 18}[p])
                    else:
                        req(t0, tbl_rw)
            if k == "s" and i in self.sw:
                t0 = self.sw[i]
                if is_valu: req(t0, 2)
                if is_rdl: req(t0, 4)
                if is_vmem: req(t0, 5)
        for (k, i) in w:
            if k in "va":
                key = (k, i)
                if key in self.mw and not is_mfma:
                    t0, p, dt = self.mw[key]
                    req(t0, {2: 5, 4: 8, 8: 12, 16: 20}[p])
                if key in self.mw and is_mfma:
                    t0, p, dt = self.mw[key]
                    if tuple(regs_of(ops[3])) != dt: req(t0, {2: 5, 4: 8, 8: 12, 16: 20}[p])
                if key in self.mc and (is_valu or is_vmem or is_ds):
                    t0, p = self.mc[key]
                    req(t0, {2: 1, 4: 3, 8: 7, 16: 15}[p])
                if key in self.st:
                    req(self.st[key], 2)
        if need > 0: self.nop(need)
        self.lines.append("  " + l)
        t = self.t
        if mn == "s_nop":
            self.t += int(ops[0], 0) + 1
        else:
            self.t += 1
        if is_valu:
            for (k, i) in w:
                if k in "va":
                    self.vw[(k, i)] = (t, "trans" if mn in TRANS else "valu")
                    self.mw.pop((k, i), None)
                else:
                    self.sw[i] = t
        elif is_mfma:
            p = 8 if "32x32" in mn else 4
            dt = tuple(regs_of(ops[0]))
            for key in dt:
                self.mw[key] = (t, p, dt)
                self.vw.pop(key, None)
            for key in regs_of(ops[3]): self.mc[key] = (t, p)
        else:
            for (k, i) in w:
                if k in "va":
                    self.vw.pop((k, i), None)
                    self.mw.pop((k, i), None)
            if is_vmem and "store" in mn and ("x4" in mn or "x3" in mn):
                d = ops[0] if mn.startswith("buffer_") else ops[1]
                for key in regs_of(d): self.st[key] = t
    def text(self):
        return "\n".join(self.lines) + "\n"
```

```python
import sys, struct
from emit import Emitter
NAME = "standalone__kv_cache_quant_int4_int2_kv_with_per_channel_or_per_token_scales__sampling"
def f32bits(x): return struct.unpack("<I", struct.pack("<f", x))[0]
LOG2E = 1.4426950408889634
SCALE = 128 ** -0.5

HEADER = open("cdna_kernels/" + NAME + ".s.ref").read().split("; Override launch")[0]

def gen(stamp=False):
    e = Emitter()
    W = 8
    NB = 16
    WIN = 4
    vK, vV, vKS = 1, 2, 3
    vSC = 4
    vB = 8
    vQ = 16
    vM, vL, vT0, vT1, vT2, vT3 = 24, 25, 26, 27, 28, 29
    RAW = 32
    T = 96
    A = 128
    D = 144
    KS = 152
    S = 216
    P = A
    BV = KS
    ACC = KS + 32
    LDS_O = 8192
    LDS_ST = 8192 + 8 * 4096
    LDS_FLAG = LDS_ST + 512
    LDS_SIZE = LDS_FLAG + 64
    sW, sOffK, sOffV, sTmp = 3, 36, 37, 38
    sMaskN8, sMaskHi = 40, 42
    sLog2e, sScale = 44, 45
    e(f"s_cmp_ge_u32 s2, 256")
    e("s_cbranch_scc1 L_end")
    e("s_load_dwordx16 s[4:19], s[0:1], 0")
    e("s_load_dwordx4 s[20:23], s[0:1], 64")
    if stamp: e("s_memrealtime s[60:61]")
    e("v_lshrrev_b32 v1, 6, v0")
    e("v_and_b32 v0, 63, v0")
    e(f"v_readfirstlane_b32 s{sW}, v1")
    e(f"v_lshrrev_b32 v{vT0}, 4, v0")
    e(f"v_and_b32 v{vT1}, 15, v0")
    e(f"v_lshrrev_b32 v{vT2}, 1, v{vT1}")
    e(f"v_lshlrev_b32 v{vK}, 9, v{vT2}")
    e(f"v_lshl_add_u32 v{vK}, v{vT0}, 5, v{vK}")
    e(f"v_and_b32 v{vT2}, 1, v0")
    e(f"v_lshl_add_u32 v{vK}, v{vT2}, 4, v{vK}")
    e(f"v_lshl_add_u32 v{vKS}, v{vT0}, 1, v{vT2}")
    e(f"v_lshlrev_b32 v{vKS}, 5, v{vKS}")
    e(f"v_lshlrev_b32 v{vV}, 10, v{vT0}")
    e(f"v_lshl_add_u32 v{vV}, v{vT1}, 4, v{vV}")
    e(f"v_and_b32 v{vT2}, 7, v0")
    e(f"v_lshlrev_b32 v{vT2}, 8, v{vT2}")
    e(f"v_lshrrev_b32 v{vT3}, 3, v{vT1}")
    e(f"v_lshl_add_u32 v{vT3}, v{vT0}, 1, v{vT3}")
    e(f"v_lshl_add_u32 v{vT2}, v{vT3}, 3, v{vT2}")
    e(f"v_lshlrev_b32 v{vT3}, 7, v{vT1}")
    e(f"v_lshl_add_u32 v{vT3}, v{vT0}, 2, v{vT3}")
    e(f"v_lshlrev_b32 v{vM}, 2, v0")
    e(f"s_mov_b32 s{sMaskN8}, 0xff00ff00")
    e(f"s_mov_b32 s{sMaskN8+1}, 0xff00ff00")
    e(f"s_mov_b32 s{sMaskHi}, 0")
    e(f"s_mov_b32 s{sMaskHi+1}, -1")
    e(f"s_mov_b32 s{sLog2e}, {f32bits(LOG2E):#x}")
    e(f"s_mov_b32 s{sScale}, {f32bits(SCALE):#x}")
    e(f"s_lshl_b32 s{sOffK}, s2, 19")
    e(f"s_lshl_b32 s{sTmp}, s{sW}, 12")
    e(f"s_add_u32 s{sOffK}, s{sOffK}, s{sTmp}")
    e(f"s_mov_b32 s{sOffV}, s{sOffK}")
    e("s_waitcnt lgkmcnt(0)")
    e("s_mov_b32 s24, s6\ns_mov_b32 s25, s7\ns_mov_b32 s26, 0x8000000\ns_mov_b32 s27, 0x20000")
    e("s_mov_b32 s28, s8\ns_mov_b32 s29, s9\ns_mov_b32 s30, 0x8000000\ns_mov_b32 s31, 0x20000")
    e(f"s_lshl_b32 s{sTmp}, s2, 3")
    e(f"s_add_u32 s{sTmp}, s{sTmp}, s{sW}")
    e(f"s_lshl_b32 s{sTmp}, s{sTmp}, 8")
    e("s_mov_b32 s32, s10\ns_mov_b32 s33, s11\ns_mov_b32 s34, 0x80000\ns_mov_b32 s35, 0x20000")
    e(f"buffer_load_dword v{T}, v{vM}, s[32:35], s{sTmp} offen")
    e("s_mov_b32 s48, s12\ns_mov_b32 s49, s13\ns_mov_b32 s50, 0x80000\ns_mov_b32 s51, 0x20000")
    e(f"buffer_load_dword v{T+1}, v{vM}, s[48:51], s{sTmp} offen")
    e(f"s_lshr_b32 s{sTmp+1}, s2, 1")
    e(f"s_lshl_b32 s{sTmp+1}, s{sTmp+1}, 11")
    e("s_mov_b32 s52, s4\ns_mov_b32 s53, s5\ns_mov_b32 s54, 0x40000\ns_mov_b32 s55, 0x20000")
    for i in range(4):
        e(f"buffer_load_dwordx2 v[{vQ+2*i}:{vQ+2*i+1}], v{vT2}, s[52:55], s{sTmp+1} offen offset:{i*64}")
    e(f"s_lshl_b32 s{sTmp}, s2, 11")
    e(f"s_lshl_b32 s46, s{sW}, 4")
    e(f"s_add_u32 s{sTmp}, s{sTmp}, s46")
    e("s_mov_b32 s56, s14\ns_mov_b32 s57, s15\ns_mov_b32 s58, 0x80000\ns_mov_b32 s59, 0x20000")
    e(f"buffer_load_dword v{T+2}, v{vT3}, s[56:59], s{sTmp} offen")
    e("s_mov_b32 s64, s16\ns_mov_b32 s65, s17\ns_mov_b32 s66, 0x80000\ns_mov_b32 s67, 0x20000")
    e(f"buffer_load_dword v{T+3}, v{vT3}, s[64:67], s{sTmp} offen")
    def issue(idx):
        slot = idx % WIN
        r = RAW + slot * 16
        if idx < NB:
            for i in range(4):
                e(f"buffer_load_dwordx4 v[{r+4*i}:{r+4*i+3}], v{vK}, s[24:27], s{sOffK} offen offset:{i*128} nt")
            e(f"s_add_u32 s{sOffK}, s{sOffK}, {W*4096}")
        elif idx < 2 * NB:
            for i in range(4):
                e(f"buffer_load_dwordx4 v[{r+4*i}:{r+4*i+3}], v{vV}, s[28:31], s{sOffV} offen offset:{i*256} nt")
            e(f"s_add_u32 s{sOffV}, s{sOffV}, {W*4096}")
    for b in range(WIN): issue(b)
    e(f"s_waitcnt vmcnt({4*WIN+6})")
    e(f"v_lshlrev_b32 v{T+4}, 16, v{T}")
    e(f"v_and_b32 v{T+5}, 0xffff0000, v{T}")
    e(f"v_lshlrev_b32 v{T+6}, 16, v{T+1}")
    e(f"v_and_b32 v{T+7}, 0xffff0000, v{T+1}")
    e(f"v_mul_f32 v{T+6}, v{T+6}, v{T+4}")
    e(f"v_mul_f32 v{T+7}, v{T+7}, v{T+5}")
    e(f"v_sub_f32 v{T+6}, 0, v{T+6}")
    e(f"v_sub_f32 v{T+7}, 0, v{T+7}")
    e(f"v_lshrrev_b32 v{T+8}, 1, v0")
    e(f"v_lshlrev_b32 v{T+8}, 5, v{T+8}")
    e(f"v_and_b32 v{T+9}, 1, v0")
    e(f"v_lshl_add_u32 v{T+8}, v{T+9}, 3, v{T+8}")
    e(f"s_lshl_b32 s{sTmp}, s{sW}, 10")
    e(f"v_add_u32 v{T+8}, s{sTmp}, v{T+8}")
    e(f"ds_write_b64 v{T+8}, v[{T+4}:{T+5}]")
    e(f"ds_write_b64 v{T+8}, v[{T+6}:{T+7}] offset:16")
    e(f"s_waitcnt vmcnt({4*WIN})")
    e(f"v_lshlrev_b32 v{vSC}, 16, v{T+2}")
    e(f"v_and_b32 v{vSC+1}, 0xffff0000, v{T+2}")
    e(f"v_lshlrev_b32 v{vSC+2}, 16, v{T+3}")
    e(f"v_and_b32 v{vSC+3}, 0xffff0000, v{T+3}")
    e(f"v_mul_f32 v{vSC+2}, v{vSC+2}, v{vSC}")
    e(f"v_mul_f32 v{vSC+3}, v{vSC+3}, v{vSC+1}")
    e(f"v_sub_f32 v{vSC+2}, 0, v{vSC+2}")
    e(f"v_sub_f32 v{vSC+3}, 0, v{vSC+3}")
    e(f"v_mov_b32 v{vM}, 0xff800000")
    e("s_waitcnt lgkmcnt(0)")
    e("s_barrier")
    def ksread(g):
        base = KS + (g & 1) * 32
        for i in range(4):
            e(f"ds_read_b128 v[{base+8*i}:{base+8*i+3}], v{vKS} offset:{g*1024+i*256}")
            e(f"ds_read_b128 v[{base+8*i+4}:{base+8*i+7}], v{vKS} offset:{g*1024+i*256+16}")
    ksread(0)
    def post(b):
        d = D + (b & 1) * 4
        sa, sb = S + 2 * b, S + 2 * b + 1
        e(f"v_cndmask_b32 v{sa}, v{d}, v{d+1}, s[{sMaskN8}:{sMaskN8+1}]")
        e(f"v_cndmask_b32 v{sb}, v{d+2}, v{d+3}, s[{sMaskN8}:{sMaskN8+1}]")
        e(f"v_add_f32_dpp v{sa}, v{sa}, v{sa} row_ror:8 row_mask:0xf bank_mask:0xf")
        e(f"v_add_f32_dpp v{sb}, v{sb}, v{sb} row_ror:8 row_mask:0xf bank_mask:0xf")
        e(f"v_cvt_pk_bf16_f32 v{vT0}, v{sa}, v{sb}")
        e(f"v_lshlrev_b32 v{sa}, 16, v{vT0}")
        e(f"v_and_b32 v{sb}, 0xffff0000, v{vT0}")
        e(f"v_mul_f32 v{sa}, s{sScale}, v{sa}")
        e(f"v_mul_f32 v{sb}, s{sScale}, v{sb}")
        e(f"v_cvt_pk_bf16_f32 v{vT0}, v{sa}, v{sb}")
        e(f"v_lshlrev_b32 v{sa}, 16, v{vT0}")
        e(f"v_and_b32 v{sb}, 0xffff0000, v{vT0}")
        e(f"v_max3_f32 v{vM}, v{vM}, v{sa}, v{sb}")
    for b in range(NB):
        slot = b % WIN
        r = RAW + slot * 16
        t = T + (b & 1) * 16
        a = A + (b & 1) * 8
        d = D + (b & 1) * 4
        g = b >> 1
        ks = KS + (g & 1) * 32
        e(f"s_waitcnt vmcnt({4*(WIN-1)})")
        for k in range(16):
            e(f"v_cvt_f32_i32 v{t+k}, v{r+k}")
        issue(b + WIN)
        if b % 2 == 0:
            e("s_waitcnt lgkmcnt(0)")
        for i in range(4):
            for hh in range(2):
                x = t + 4 * i + 2 * hh
                e(f"v_pk_fma_f32 v[{x}:{x+1}], v[{x}:{x+1}], v[{ks+8*i+2*hh}:{ks+8*i+2*hh+1}], v[{ks+8*i+4+2*hh}:{ks+8*i+4+2*hh+1}]")
        if b % 2 == 0 and g + 1 < 8:
            ksread(g + 1)
        for k in range(8):
            e(f"v_cvt_pk_bf16_f32 v{a+k}, v{t+2*k}, v{t+2*k+1}")
        e(f"v_mfma_f32_16x16x32_bf16 v[{d}:{d+3}], v[{a}:{a+3}], v[{vQ}:{vQ+3}], 0")
        e(f"v_mfma_f32_16x16x32_bf16 v[{d}:{d+3}], v[{a+4}:{a+7}], v[{vQ+4}:{vQ+7}], v[{d}:{d+3}]")
        if b > 0: post(b - 1)
    post(NB - 1)
    def xlane(reg, op):
        e(f"v_mov_b32 v{vT0}, v{reg}")
        e(f"v_permlane32_swap_b32 v{reg}, v{vT0}")
        e(f"{op} v{reg}, v{reg}, v{vT0}")
        e(f"v_mov_b32 v{vT0}, v{reg}")
        e(f"v_permlane16_swap_b32 v{reg}, v{vT0}")
        e(f"{op} v{reg}, v{reg}, v{vT0}")
    xlane(vM, "v_max_f32")
    e(f"v_mul_f32 v{vT1}, s{sLog2e}, v{vM}")
    e(f"v_sub_f32 v{vT1}, 0, v{vT1}")
    for k in range(32):
        e(f"v_fma_f32 v{S+k}, v{S+k}, s{sLog2e}, v{vT1}")
    for k in range(32):
        e(f"v_exp_f32 v{S+k}, v{S+k}")
    for b in range(NB):
        e(f"v_cvt_pk_bf16_f32 v{P+b}, v{S+2*b}, v{S+2*b+1}")
    e(f"v_add_f32 v{vL}, v{S}, v{S+1}")
    e(f"v_add_f32 v{vT2}, v{S+2}, v{S+3}")
    for k in range(4, 32, 2):
        e(f"v_add_f32 v{vL}, v{vL}, v{S+k}")
        e(f"v_add_f32 v{vT2}, v{vT2}, v{S+k+1}")
    e(f"v_add_f32 v{vL}, v{vL}, v{vT2}")
    xlane(vL, "v_add_f32")
    for b in range(NB):
        idx = NB + b
        slot = idx % WIN
        r = RAW + slot * 16
        t = T + (b & 1) * 16
        bb = vB + (b & 1) * 4
        j = b & 3
        for k in range(4):
            e(f"v_mov_b32_dpp v{bb+k}, v{vSC+k} row_newbcast:{b} row_mask:0xf bank_mask:0xf")
        rem = min(WIN - 1, NB - 1 - b)
        e(f"s_waitcnt vmcnt({4*rem})")
        for k in range(16):
            e(f"v_cvt_f32_i32 v{t+k}, v{r+k}")
        issue(idx + WIN)
        for ab in range(2):
            for k in range(4):
                x = t + ab * 8 + 2 * k
                e(f"v_pk_fma_f32 v[{x}:{x+1}], v[{x}:{x+1}], v[{bb}:{bb+1}], v[{bb+2}:{bb+3}] op_sel:[0,{ab},{ab}] op_sel_hi:[1,{ab},{ab}]")
        for h in range(2):
            for jj in range(4):
                e(f"v_cvt_pk_bf16_f32 v{BV+(h*4+jj)*4+j}, v{t+h*4+jj}, v{t+8+h*4+jj}")
        if j == 3:
            p = P + (b - 3)
            for m in range(8):
                c = "0" if b == 3 else f"v[{ACC+4*m}:{ACC+4*m+3}]"
                e(f"v_mfma_f32_16x16x32_bf16 v[{ACC+4*m}:{ACC+4*m+3}], v[{p}:{p+3}], v[{BV+4*m}:{BV+4*m+3}], {c}")
    e(f"v_lshrrev_b32 v{vT0}, 4, v0")
    e(f"v_and_b32 v{vT1}, 1, v{vT0}")
    e(f"v_lshlrev_b32 v{vT1}, 11, v{vT1}")
    e(f"v_lshrrev_b32 v{vT0}, 1, v{vT0}")
    e(f"v_lshl_add_u32 v{vT1}, v{vT0}, 8, v{vT1}")
    e(f"v_and_b32 v{vT0}, 15, v0")
    e(f"v_lshl_add_u32 v{vT1}, v{vT0}, 4, v{vT1}")
    e(f"s_lshl_b32 s{sTmp}, s{sW}, 12")
    e(f"v_add_u32 v{vT1}, s{sTmp}, v{vT1}")
    e(f"v_and_b32 v{vT2}, 7, v0")
    e(f"v_lshlrev_b32 v{vT2}, 3, v{vT2}")
    e(f"s_lshl_b32 s{sTmp}, s{sW}, 6")
    e(f"v_add_u32 v{vT2}, s{sTmp}, v{vT2}")
    e(f"ds_write_b64 v{vT2}, v[{vM}:{vL}] offset:{LDS_ST}")
    for r in range(4):
        for jj in range(4):
            e(f"v_cndmask_b32 v{T+4*r+jj}, v{ACC+4*jj+r}, v{ACC+16+4*jj+r}, s[{sMaskHi}:{sMaskHi+1}]")
        e(f"ds_write_b128 v{vT1}, v[{T+4*r}:{T+4*r+3}] offset:{LDS_O+r*512}")
    e("s_waitcnt lgkmcnt(0)")
    e("s_barrier")
    e(f"s_lshl_b32 s{sTmp}, s{sW}, 3")
    e(f"v_mov_b32 v{vT0}, s{sTmp}")
    for w in range(8):
        e(f"ds_read_b64 v[{RAW+2*w}:{RAW+2*w+1}], v{vT0} offset:{LDS_ST+w*64}")
    e(f"s_lshl_b32 s{sTmp}, s{sW}, 9")
    e(f"v_lshlrev_b32 v{vT1}, 3, v0")
    e(f"v_add_u32 v{vT1}, s{sTmp}, v{vT1}")
    for w in range(8):
        e(f"ds_read_b64 v[{RAW+16+2*w}:{RAW+16+2*w+1}], v{vT1} offset:{LDS_O+w*4096}")
    e("s_waitcnt lgkmcnt(8)")
    R = RAW + 32
    e(f"v_max3_f32 v{R+2}, v{RAW}, v{RAW+2}, v{RAW+4}")
    e(f"v_max3_f32 v{R+2}, v{R+2}, v{RAW+6}, v{RAW+8}")
    e(f"v_max3_f32 v{R+2}, v{R+2}, v{RAW+10}, v{RAW+12}")
    e(f"v_max_f32 v{R+2}, v{R+2}, v{RAW+14}")
    for w in range(8):
        e(f"v_sub_f32 v{RAW+2*w}, v{RAW+2*w}, v{R+2}")
        e(f"v_mul_f32 v{RAW+2*w}, s{sLog2e}, v{RAW+2*w}")
        e(f"v_exp_f32 v{RAW+2*w}, v{RAW+2*w}")
    e("s_waitcnt lgkmcnt(0)")
    e(f"v_mul_f32 v{R+3}, v{RAW}, v{RAW+1}")
    e(f"v_mul_f32 v{R}, v{RAW}, v{RAW+16}")
    e(f"v_mul_f32 v{R+1}, v{RAW}, v{RAW+17}")
    for w in range(1, 8):
        e(f"v_fmac_f32 v{R+3}, v{RAW+2*w}, v{RAW+2*w+1}")
        e(f"v_fmac_f32 v{R}, v{RAW+2*w}, v{RAW+16+2*w}")
        e(f"v_fmac_f32 v{R+1}, v{RAW+2*w}, v{RAW+17+2*w}")
    e("s_mov_b32 s32, s22\ns_mov_b32 s33, s23\ns_mov_b32 s34, 0x200000\ns_mov_b32 s35, 0x20000")
    e(f"v_lshlrev_b32 v{vT0}, 4, v0")
    e(f"s_lshl_b32 s{sTmp}, s2, 13")
    e(f"s_lshl_b32 s46, s{sW}, 10")
    e(f"s_add_u32 s{sTmp}, s{sTmp}, s46")
    e(f"buffer_store_dwordx4 v[{R}:{R+3}], v{vT0}, s[32:35], s{sTmp} offen sc0 sc1")
    e("s_waitcnt vmcnt(0)")
    e("s_barrier")
    e(f"s_cmp_lg_u32 s{sW}, 0")
    e("s_cbranch_scc1 L_wait")
    e("s_lshr_b32 s46, s2, 1")
    e("s_and_b32 s47, s46, 1")
    e("s_lshl_b32 s47, s47, 4")
    e("s_lshr_b32 s46, s46, 1")
    e("s_lshl_b32 s46, s46, 2")
    e("s_lshl_b32 s39, 1, s47")
    e(f"v_mov_b32 v{vT1}, s46")
    e(f"v_mov_b32 v{vT2}, s39")
    e("s_mov_b64 s[68:69], exec")
    e("s_mov_b64 exec, 1")
    e(f"global_atomic_add v{vT3}, v{vT1}, v{vT2}, s[20:21] sc0 sc1")
    e("s_waitcnt vmcnt(0)")
    e(f"v_lshrrev_b32 v{vT3}, s47, v{vT3}")
    e(f"v_and_b32 v{vT3}, 0xffff, v{vT3}")
    e(f"v_mov_b32 v{vT1}, {LDS_FLAG}")
    e(f"ds_write_b32 v{vT1}, v{vT3}")
    e("s_mov_b64 exec, s[68:69]")
    e("s_waitcnt lgkmcnt(0)")
    e.label("L_wait")
    e("s_barrier")
    e(f"v_mov_b32 v{vT1}, {LDS_FLAG}")
    e(f"ds_read_b32 v{vT3}, v{vT1}")
    e("s_waitcnt lgkmcnt(0)")
    e(f"v_readfirstlane_b32 s46, v{vT3}")
    e("s_nop 3")
    e("s_cmp_eq_u32 s46, 0")
    e("s_cbranch_scc1 L_fin")
    e(f"s_xor_b32 s{sTmp}, s{sTmp}, 8192")
    X = RAW
    e(f"buffer_load_dwordx4 v[{X}:{X+3}], v{vT0}, s[32:35], s{sTmp} offen sc0 sc1")
    e("s_mov_b32 s32, s18\ns_mov_b32 s33, s19\ns_mov_b32 s34, 0x40000\ns_mov_b32 s35, 0x20000")
    e(f"s_lshr_b32 s{sTmp}, s2, 1")
    e(f"s_lshl_b32 s{sTmp}, s{sTmp}, 11")
    e(f"s_lshl_b32 s46, s{sW}, 8")
    e(f"s_add_u32 s{sTmp}, s{sTmp}, s46")
    e(f"v_lshlrev_b32 v{vT0}, 2, v0")
    e("s_waitcnt vmcnt(0)")
    e(f"v_max_f32 v{vT1}, v{R+2}, v{X+2}")
    e(f"v_sub_f32 v{R+2}, v{R+2}, v{vT1}")
    e(f"v_sub_f32 v{X+2}, v{X+2}, v{vT1}")
    e(f"v_mul_f32 v{R+2}, s{sLog2e}, v{R+2}")
    e(f"v_mul_f32 v{X+2}, s{sLog2e}, v{X+2}")
    e(f"v_exp_f32 v{R+2}, v{R+2}")
    e(f"v_exp_f32 v{X+2}, v{X+2}")
    e(f"v_mul_f32 v{R}, v{R}, v{R+2}")
    e(f"v_mul_f32 v{R+1}, v{R+1}, v{R+2}")
    e(f"v_mul_f32 v{R+3}, v{R+3}, v{R+2}")
    e(f"v_mul_f32 v{X}, v{X}, v{X+2}")
    e(f"v_mul_f32 v{X+1}, v{X+1}, v{X+2}")
    e(f"v_mul_f32 v{X+3}, v{X+3}, v{X+2}")
    e(f"v_add_f32 v{R}, v{R}, v{X}")
    e(f"v_add_f32 v{R+1}, v{R+1}, v{X+1}")
    e(f"v_add_f32 v{R+3}, v{R+3}, v{X+3}")
    e(f"v_rcp_f32 v{R+3}, v{R+3}")
    e(f"v_mul_f32 v{R}, v{R}, v{R+3}")
    e(f"v_mul_f32 v{R+1}, v{R+1}, v{R+3}")
    e(f"v_cvt_pk_bf16_f32 v{R}, v{R}, v{R+1}")
    e(f"buffer_store_dword v{R}, v{vT0}, s[32:35], s{sTmp} offen")
    e.label("L_fin")
    if stamp:
        e("s_memrealtime s[62:63]")
        e("s_getreg_b32 s46, hwreg(HW_REG_XCC_ID)")
        e("s_waitcnt lgkmcnt(0)")
        e(f"s_lshl_b32 s{sTmp}, s2, 3\ns_add_u32 s{sTmp}, s{sTmp}, s{sW}\ns_lshl_b32 s{sTmp}, s{sTmp}, 5\ns_add_u32 s{sTmp}, s{sTmp}, 0x400000")
        e(f"v_mov_b32 v8, s60\nv_mov_b32 v9, s60\nv_mov_b32 v10, s62\nv_mov_b32 v11, s46\nv_mov_b32 v2, s{sTmp}")
        e("s_mov_b64 exec, 1")
        e("global_store_dwordx4 v2, v[8:11], s[22:23]")
    e.label("L_end")
    e("s_endpgm")
    out = HEADER
    out += f"; @launch grid=(256,1,1) block=(512,1,1) lds={LDS_SIZE}\n"
    out += '.amdgcn_target "amdgcn-amd-amdhsa--gfx950"\n.text\n'
    out += f".globl {NAME}_kernel\n.p2align 8\n.type {NAME}_kernel,@function\n{NAME}_kernel:\n"
    out += e.text()
    out += f""".section .rodata,"a"
.p2align 6
.amdhsa_kernel {NAME}_kernel
  .amdhsa_next_free_vgpr 248
  .amdhsa_next_free_sgpr 80
  .amdhsa_accum_offset 248
  .amdhsa_group_segment_fixed_size 0
  .amdhsa_kernarg_size 80
  .amdhsa_user_sgpr_count 2
  .amdhsa_user_sgpr_kernarg_segment_ptr 1
  .amdhsa_system_sgpr_workgroup_id_x 1
.end_amdhsa_kernel
"""
    return out, LDS_SIZE
if __name__ == "__main__":
    o, lds = gen()
    open("cdna_kernels/" + NAME + ".s", "w").write(o)
    o2, _ = gen(stamp=True)
    open("k_stamp.s", "w").write(o2)
    print("lds", lds)
```

```python
import sys, struct
from emit import Emitter
NAME = "standalone__kv_cache_quant_int4_int2_kv_with_per_channel_or_per_token_scales__sampling"
def f32bits(x): return struct.unpack("<I", struct.pack("<f", x))[0]
LOG2E = 1.4426950408889634
SCALE = 128 ** -0.5
HEADER = open("cdna_kernels/" + NAME + ".s.ref").read().split("; Override launch")[0]

def gen(stamp=False, PROGB=10, REMAP=True, SMALLPOL="nt", OUTPOL="sc0 sc1", POLL=True):
    e = Emitter()
    W, NB, WIN = 8, 16, 4
    vK, vV, vKS, vVS = 1, 2, 3, 4
    vB = 8
    vQ = 16
    vM, vL, vT0, vT1, vT2, vT3 = 24, 25, 26, 27, 28, 29
    RAW = 32
    T = 96
    A = 128
    D = 144
    KS = 152
    S = 216
    P, BV, ACC = A, KS, KS + 32
    LDS_KT, LDS_VT, LDS_Q = 0, 8192, 16384
    LDS_O = 18432
    LDS_ST = LDS_O + 8 * 4096
    LDS_FLAG = LDS_ST + 512
    LDS_P9 = LDS_FLAG + 64
    LDS_SIZE = LDS_P9 + 8192
    sW, sOffK, sOffV, sTmp = 3, 36, 37, 38
    sMaskN8, sMaskHi = 40, 42
    sLog2e, sScale = 44, 45
    e("s_load_dwordx16 s[4:19], s[0:1], 0")
    e("s_load_dwordx4 s[20:23], s[0:1], 64")
    e(f"s_cmp_ge_u32 s2, 256")
    e("s_cbranch_scc1 L_end")
    if stamp: e("s_memrealtime s[60:61]")
    e("v_lshrrev_b32 v1, 6, v0")
    e("v_and_b32 v0, 63, v0")
    e(f"v_readfirstlane_b32 s{sW}, v1")
    if REMAP:
        e("s_lshr_b32 s46, s2, 3")
        e("s_and_b32 s46, s46, 3")
        e("s_lshl_b32 s46, s46, 1")
        e("s_xor_b32 s2, s2, s46")
    e(f"v_bfe_u32 v{vT2}, v0, 1, 3")
    e(f"v_lshrrev_b32 v{vT0}, 4, v0")
    e(f"v_lshlrev_b32 v{vK}, 9, v{vT2}")
    e(f"v_lshl_add_u32 v{vK}, v{vT0}, 5, v{vK}")
    e(f"v_and_b32 v{vT2}, 1, v0")
    e(f"v_lshl_add_u32 v{vK}, v{vT2}, 4, v{vK}")
    e(f"v_lshlrev_b32 v{vT3}, 4, v0")
    e(f"s_lshl_b32 s{sOffK}, s2, 19")
    e(f"s_lshl_b32 s{sTmp}, s{sW}, 12")
    e(f"s_add_u32 s{sOffK}, s{sOffK}, s{sTmp}")
    e("s_mov_b32 s26, 0x8000000\ns_mov_b32 s27, 0x20000")
    e(f"s_mov_b32 s{sOffV}, s{sOffK}")
    e(f"s_and_b32 s46, s{sW}, 1")
    e("s_lshl_b32 s46, s46, 10")
    e("s_lshl_b32 s47, s2, 11")
    e("s_add_u32 s47, s47, s46")
    e("s_lshr_b32 s39, s2, 1")
    e("s_lshl_b32 s39, s39, 11")
    e("s_add_u32 s39, s39, s46")
    e("s_mov_b32 s34, 0x80000\ns_mov_b32 s35, 0x20000")
    e("s_mov_b32 s50, 0x80000\ns_mov_b32 s51, 0x20000")
    e("s_mov_b32 s54, 0x40000\ns_mov_b32 s55, 0x20000")
    e(f"s_cmp_lt_u32 s{sW}, 2")
    e("s_waitcnt lgkmcnt(0)")
    e("s_cselect_b32 s32, s10, s14\ns_cselect_b32 s33, s11, s15")
    e("s_cselect_b32 s48, s12, s16\ns_cselect_b32 s49, s13, s17")
    e("s_mov_b32 s52, s4\ns_mov_b32 s53, s5")
    e("s_mov_b32 s24, s6\ns_mov_b32 s25, s7")
    e("s_cbranch_scc0 L_noq")
    e(f"buffer_load_dwordx4 v[{T+8}:{T+11}], v{vT3}, s[52:55], s39 offen {SMALLPOL}")
    e.label("L_noq")
    e(f"s_cmp_lt_u32 s{sW}, 4")
    e("s_cbranch_scc0 L_nosc")
    e(f"buffer_load_dwordx4 v[{T}:{T+3}], v{vT3}, s[32:35], s47 offen {SMALLPOL}")
    e(f"buffer_load_dwordx4 v[{T+4}:{T+7}], v{vT3}, s[48:51], s47 offen {SMALLPOL}")
    e.label("L_nosc")
    def issue(idx):
        slot = idx % WIN
        r = RAW + slot * 16
        if idx < NB:
            for i in range(4):
                e(f"buffer_load_dwordx4 v[{r+4*i}:{r+4*i+3}], v{vK}, s[24:27], s{sOffK} offen offset:{i*128} nt")
            e(f"s_add_u32 s{sOffK}, s{sOffK}, {W*4096}")
        elif idx < 2 * NB:
            for i in range(4):
                e(f"buffer_load_dwordx4 v[{r+4*i}:{r+4*i+3}], v{vV}, s[28:31], s{sOffV} offen offset:{i*256} nt")
            e(f"s_add_u32 s{sOffV}, s{sOffV}, {W*4096}")
    for b in range(WIN): issue(b)
    e("s_mov_b32 s28, s8\ns_mov_b32 s29, s9\ns_mov_b32 s30, 0x8000000\ns_mov_b32 s31, 0x20000")
    e(f"v_and_b32 v{vT1}, 15, v0")
    e(f"v_lshl_add_u32 v{vKS}, v{vT0}, 1, v{vT2}")
    e(f"v_lshlrev_b32 v{vKS}, 5, v{vKS}")
    e(f"v_lshlrev_b32 v{vV}, 10, v{vT0}")
    e(f"v_lshl_add_u32 v{vV}, v{vT1}, 4, v{vV}")
    e(f"s_lshl_b32 s{sTmp}, s{sW}, 6")
    e(f"v_lshlrev_b32 v{vVS}, 4, v{vT0}")
    e(f"v_add_u32 v{vVS}, s{sTmp}, v{vVS}")
    e(f"v_and_b32 v{vL}, 7, v0")
    e(f"v_lshlrev_b32 v{vL}, 8, v{vL}")
    e(f"v_lshrrev_b32 v{vT1}, 3, v{vT1}")
    e(f"v_lshl_add_u32 v{vT1}, v{vT0}, 1, v{vT1}")
    e(f"v_lshl_add_u32 v{vL}, v{vT1}, 3, v{vL}")
    e(f"s_mov_b32 s{sMaskN8}, 0xff00ff00")
    e(f"s_mov_b32 s{sMaskN8+1}, 0xff00ff00")
    e(f"s_mov_b32 s{sMaskHi}, 0")
    e(f"s_mov_b32 s{sMaskHi+1}, -1")
    e(f"s_mov_b32 s{sLog2e}, {f32bits(LOG2E):#x}")
    e(f"s_mov_b32 s{sScale}, {f32bits(SCALE):#x}")
    e(f"v_mov_b32 v{vM}, 0xff800000")
    e(f"s_cmp_lt_u32 s{sW}, 4")
    e("s_cbranch_scc0 L_notab")
    e(f"s_lshl_b32 s{sTmp}, s{sW}, 12")
    e(f"v_lshlrev_b32 v{vT1}, 6, v0")
    e(f"v_add_u32 v{vT1}, s{sTmp}, v{vT1}")
    e(f"v_mov_b32 v{T+28}, 0")
    e(f"v_mov_b32 v{T+29}, 0")
    e(f"v_mov_b32 v{T+30}, 0")
    e(f"v_mov_b32 v{T+31}, 0")
    e(f"v_mov_b32 v{vT2}, {LDS_FLAG}")
    e(f"ds_write_b128 v{vT2}, v[{T+28}:{T+31}]")
    e(f"s_waitcnt vmcnt({4*WIN})")
    for k in range(4):
        o = T + 12 + 4 * k
        e(f"v_lshlrev_b32 v{o}, 16, v{T+k}")
        e(f"v_and_b32 v{o+1}, 0xffff0000, v{T+k}")
        e(f"v_lshlrev_b32 v{o+2}, 16, v{T+4+k}")
        e(f"v_and_b32 v{o+3}, 0xffff0000, v{T+4+k}")
        e(f"v_mul_f32 v{o+2}, -v{o+2}, v{o}")
        e(f"v_mul_f32 v{o+3}, -v{o+3}, v{o+1}")
        e(f"ds_write_b128 v{vT1}, v[{o}:{o+3}] offset:{16*k}")
    e(f"s_cmp_lt_u32 s{sW}, 2")
    e("s_cbranch_scc0 L_notab")
    e(f"s_lshl_b32 s{sTmp}, s{sW}, 10")
    e(f"v_add_u32 v{vT3}, s{sTmp}, v{vT3}")
    e(f"ds_write_b128 v{vT3}, v[{T+8}:{T+11}] offset:{LDS_Q}")
    e.label("L_notab")
    e("s_waitcnt lgkmcnt(0)")
    e("s_barrier")
    for i in range(4):
        e(f"ds_read_b64 v[{vQ+2*i}:{vQ+2*i+1}], v{vL} offset:{LDS_Q+i*64}")
    def ksread(g):
        base = KS + (g & 1) * 32
        for i in range(4):
            e(f"ds_read_b128 v[{base+8*i}:{base+8*i+3}], v{vKS} offset:{LDS_KT+g*1024+i*256}")
            e(f"ds_read_b128 v[{base+8*i+4}:{base+8*i+7}], v{vKS} offset:{LDS_KT+g*1024+i*256+16}")
    ksread(0)
    def post(b):
        d = D + (b & 1) * 4
        sa, sb = S + 2 * b, S + 2 * b + 1
        e(f"v_cndmask_b32 v{sa}, v{d}, v{d+1}, s[{sMaskN8}:{sMaskN8+1}]")
        e(f"v_cndmask_b32 v{sb}, v{d+2}, v{d+3}, s[{sMaskN8}:{sMaskN8+1}]")
        e(f"v_add_f32_dpp v{sa}, v{sa}, v{sa} row_ror:8 row_mask:0xf bank_mask:0xf")
        e(f"v_add_f32_dpp v{sb}, v{sb}, v{sb} row_ror:8 row_mask:0xf bank_mask:0xf")
        e(f"v_cvt_pk_bf16_f32 v{vT0}, v{sa}, v{sb}")
        e(f"v_lshlrev_b32 v{sa}, 16, v{vT0}")
        e(f"v_and_b32 v{sb}, 0xffff0000, v{vT0}")
        e(f"v_mul_f32 v{sa}, s{sScale}, v{sa}")
        e(f"v_mul_f32 v{sb}, s{sScale}, v{sb}")
        e(f"v_cvt_pk_bf16_f32 v{vT0}, v{sa}, v{sb}")
        e(f"v_lshlrev_b32 v{sa}, 16, v{vT0}")
        e(f"v_and_b32 v{sb}, 0xffff0000, v{vT0}")
        e(f"v_max3_f32 v{vM}, v{vM}, v{sa}, v{sb}")
    for b in range(NB):
        r = RAW + (b % WIN) * 16
        t = T + (b & 1) * 16
        a = A + (b & 1) * 8
        d = D + (b & 1) * 4
        g = b >> 1
        ks = KS + (g & 1) * 32
        e(f"s_waitcnt vmcnt({4*(WIN-1)})")
        for k in range(16):
            e(f"v_cvt_f32_i32 v{t+k}, v{r+k}")
        issue(b + WIN)
        if b % 2 == 0:
            e("s_waitcnt lgkmcnt(0)")
        for i in range(4):
            for hh in range(2):
                x = t + 4 * i + 2 * hh
                y = ks + 8 * i + 4 * hh
                e(f"v_pk_fma_f32 v[{x}:{x+1}], v[{x}:{x+1}], v[{y}:{y+1}], v[{y+2}:{y+3}]")
        if b % 2 == 0 and g + 1 < 8:
            ksread(g + 1)
        for k in range(8):
            e(f"v_cvt_pk_bf16_f32 v{a+k}, v{t+2*k}, v{t+2*k+1}")
        e(f"v_mfma_f32_16x16x32_bf16 v[{d}:{d+3}], v[{a}:{a+3}], v[{vQ}:{vQ+3}], 0")
        e(f"v_mfma_f32_16x16x32_bf16 v[{d}:{d+3}], v[{a+4}:{a+7}], v[{vQ+4}:{vQ+7}], v[{d}:{d+3}]")
        if b > 0: post(b - 1)
    post(NB - 1)
    if stamp: e("s_memrealtime s[74:75]")
    def vsread(b):
        bb = vB + (b & 1) * 4
        e(f"ds_read_b128 v[{bb}:{bb+3}], v{vVS} offset:{LDS_VT+b*512}")
    vsread(0)
    def xlane(reg, op):
        e(f"v_mov_b32 v{vT0}, v{reg}")
        e(f"v_permlane32_swap_b32 v{reg}, v{vT0}")
        e(f"{op} v{reg}, v{reg}, v{vT0}")
        e(f"v_mov_b32 v{vT0}, v{reg}")
        e(f"v_permlane16_swap_b32 v{reg}, v{vT0}")
        e(f"{op} v{reg}, v{reg}, v{vT0}")
    xlane(vM, "v_max_f32")
    e(f"v_mul_f32 v{vT1}, s{sLog2e}, v{vM}")
    e(f"v_sub_f32 v{vT1}, 0, v{vT1}")
    for k in range(32):
        e(f"v_fma_f32 v{S+k}, v{S+k}, s{sLog2e}, v{vT1}")
    for k in range(32):
        e(f"v_exp_f32 v{S+k}, v{S+k}")
    for b in range(NB):
        e(f"v_cvt_pk_bf16_f32 v{P+b}, v{S+2*b}, v{S+2*b+1}")
    e(f"v_add_f32 v{vL}, v{S}, v{S+1}")
    e(f"v_add_f32 v{vT2}, v{S+2}, v{S+3}")
    for k in range(4, 32, 2):
        e(f"v_add_f32 v{vL}, v{vL}, v{S+k}")
        e(f"v_add_f32 v{vT2}, v{vT2}, v{S+k+1}")
    e(f"v_add_f32 v{vL}, v{vL}, v{vT2}")
    xlane(vL, "v_add_f32")
    for b in range(NB):
        idx = NB + b
        r = RAW + (idx % WIN) * 16
        t = T + (b & 1) * 16
        bb = vB + (b & 1) * 4
        j = b & 3
        if b == PROGB and POLL:
            e(f"v_mov_b32 v{vT0}, {LDS_FLAG}")
            e(f"v_mov_b32 v{vT1}, 1")
            e("s_mov_b64 exec, 1")
            e(f"ds_add_u32 v{vT0}, v{vT1} offset:8")
            e("s_mov_b64 exec, -1")
        rem = min(WIN - 1, NB - 1 - b)
        e(f"s_waitcnt vmcnt({4*rem})")
        for k in range(16):
            e(f"v_cvt_f32_i32 v{t+k}, v{r+k}")
        issue(idx + WIN)
        e("s_waitcnt lgkmcnt(0)")
        if b + 1 < NB: vsread(b + 1)
        for ab in range(2):
            for k in range(4):
                x = t + ab * 8 + 2 * k
                e(f"v_pk_fma_f32 v[{x}:{x+1}], v[{x}:{x+1}], v[{bb}:{bb+1}], v[{bb+2}:{bb+3}] op_sel:[0,{ab},{ab}] op_sel_hi:[1,{ab},{ab}]")
        for h in range(2):
            for jj in range(4):
                e(f"v_cvt_pk_bf16_f32 v{BV+(h*4+jj)*4+j}, v{t+h*4+jj}, v{t+8+h*4+jj}")
        if j == 3:
            p = P + (b - 3)
            for m in range(8):
                c = "0" if b == 3 else f"v[{ACC+4*m}:{ACC+4*m+3}]"
                e(f"v_mfma_f32_16x16x32_bf16 v[{ACC+4*m}:{ACC+4*m+3}], v[{p}:{p+3}], v[{BV+4*m}:{BV+4*m+3}], {c}")
    if stamp: e("s_memrealtime s[72:73]")
    e(f"v_lshrrev_b32 v{vT0}, 4, v0")
    e(f"v_and_b32 v{vT1}, 1, v{vT0}")
    e(f"v_lshlrev_b32 v{vT1}, 11, v{vT1}")
    e(f"v_lshrrev_b32 v{vT0}, 1, v{vT0}")
    e(f"v_lshl_add_u32 v{vT1}, v{vT0}, 8, v{vT1}")
    e(f"v_and_b32 v{vT0}, 15, v0")
    e(f"v_lshl_add_u32 v{vT1}, v{vT0}, 4, v{vT1}")
    e(f"s_lshl_b32 s{sTmp}, s{sW}, 12")
    e(f"v_add_u32 v{vT1}, s{sTmp}, v{vT1}")
    e(f"v_and_b32 v{vT2}, 7, v0")
    e(f"v_lshlrev_b32 v{vT2}, 3, v{vT2}")
    e(f"s_lshl_b32 s{sTmp}, s{sW}, 6")
    e(f"v_add_u32 v{vT2}, s{sTmp}, v{vT2}")
    e(f"ds_write_b64 v{vT2}, v[{vM}:{vL}] offset:{LDS_ST}")
    for r in range(4):
        for jj in range(4):
            e(f"v_cndmask_b32 v{T+4*r+jj}, v{ACC+4*jj+r}, v{ACC+16+4*jj+r}, s[{sMaskHi}:{sMaskHi+1}]")
        e(f"ds_write_b128 v{vT1}, v[{T+4*r}:{T+4*r+3}] offset:{LDS_O+r*512}")
    e("s_lshr_b32 s46, s2, 1")
    e("s_and_b32 s47, s46, 1")
    e("s_lshl_b32 s47, s47, 4")
    e("s_lshr_b32 s46, s46, 1")
    e("s_lshl_b32 s70, s46, 2")
    e("s_mov_b32 s32, s22\ns_mov_b32 s33, s23\ns_mov_b32 s34, 0x200000\ns_mov_b32 s35, 0x20000")
    e(f"v_mov_b32 v{vT0}, {LDS_FLAG}")
    if POLL:
        e(f"v_mov_b32 v{vT1}, 1")
        e("s_mov_b64 exec, 1")
        e(f"ds_add_rtn_u32 v{vT2}, v{vT0}, v{vT1} offset:4")
        e("s_mov_b64 exec, -1")
        e("s_waitcnt lgkmcnt(0)")
        e(f"v_readfirstlane_b32 s46, v{vT2}")
        e("s_nop 3")
        e("s_cmp_lg_u32 s46, 0")
        e("s_cbranch_scc1 L_bar2")
        e(f"v_mov_b32 v{vT1}, s70")
        e.label("L_poll")
        e(f"ds_read_b64 v[{vT2}:{vT3}], v{vT0} offset:4")
        e("s_waitcnt lgkmcnt(0)")
        e(f"v_readfirstlane_b32 s46, v{vT2}")
        e(f"v_readfirstlane_b32 s39, v{vT3}")
        e("s_nop 3")
        e("s_cmp_eq_u32 s46, 8")
        e("s_cbranch_scc1 L_bar2")
        e("s_cmp_eq_u32 s39, 8")
        e("s_cbranch_scc1 L_gpoll")
        e("s_sleep 8")
        e("s_branch L_poll")
        e.label("L_gpoll")
        e(f"global_load_dword v{vT2}, v{vT1}, s[20:21] sc0 sc1")
        e("s_waitcnt vmcnt(0)")
        e(f"v_readfirstlane_b32 s46, v{vT2}")
        e("s_nop 3")
        e("s_lshr_b32 s46, s46, s47")
        e("s_and_b32 s46, s46, 0xffff")
        e("s_cmp_lg_u32 s46, 0")
        e("s_cbranch_scc1 L_fetch")
        e("s_sleep 2")
        e("s_branch L_poll")
        e.label("L_fetch")
        e(f"v_lshlrev_b32 v{vT2}, 4, v0")
        e(f"s_lshl_b32 s{sTmp}, s2, 13")
        e(f"s_xor_b32 s{sTmp}, s{sTmp}, 8192")
        e(f"s_add_u32 s46, s{sTmp}, 4096")
        for w in range(8):
            e(f"buffer_load_dwordx4 v[{RAW+4*w}:{RAW+4*w+3}], v{vT2}, s[32:35], s{sTmp if w < 4 else 46} offen offset:{(w&3)*1024} sc0 sc1")
        e(f"v_mov_b32 v{vT1}, 1")
        for w in range(8):
            e(f"s_waitcnt vmcnt({7-w})")
            e(f"ds_write_b128 v{vT2}, v[{RAW+4*w}:{RAW+4*w+3}] offset:{LDS_P9+w*1024}")
        e(f"ds_write_b32 v{vT0}, v{vT1} offset:12")
    e.label("L_bar2")
    e("s_waitcnt lgkmcnt(0)")
    e("s_barrier")
    X = RAW + 40
    R = RAW + 32
    e(f"v_mov_b32 v{vT0}, {LDS_FLAG}")
    e(f"ds_read_b32 v{vT3}, v{vT0} offset:12")
    e(f"v_lshlrev_b32 v{vT2}, 4, v0")
    e(f"s_lshl_b32 s{sTmp}, s{sW}, 10")
    e(f"v_add_u32 v{vT2}, s{sTmp}, v{vT2}")
    e(f"ds_read_b128 v[{X}:{X+3}], v{vT2} offset:{LDS_P9}")
    e(f"s_lshl_b32 s{sTmp}, s{sW}, 3")
    e(f"v_mov_b32 v{vT0}, s{sTmp}")
    for w in range(8):
        e(f"ds_read_b64 v[{RAW+2*w}:{RAW+2*w+1}], v{vT0} offset:{LDS_ST+w*64}")
    e(f"s_lshl_b32 s{sTmp}, s{sW}, 9")
    e(f"v_lshlrev_b32 v{vT1}, 3, v0")
    e(f"v_add_u32 v{vT1}, s{sTmp}, v{vT1}")
    e("s_waitcnt lgkmcnt(0)")
    for w in range(8):
        e(f"ds_read_b64 v[{RAW+16+2*w}:{RAW+16+2*w+1}], v{vT1} offset:{LDS_O+w*4096}")
    e(f"v_max3_f32 v{R+2}, v{RAW}, v{RAW+2}, v{RAW+4}")
    e(f"v_max3_f32 v{R+2}, v{R+2}, v{RAW+6}, v{RAW+8}")
    e(f"v_max3_f32 v{R+2}, v{R+2}, v{RAW+10}, v{RAW+12}")
    e(f"v_max_f32 v{R+2}, v{R+2}, v{RAW+14}")
    for w in range(8):
        e(f"v_sub_f32 v{RAW+2*w}, v{RAW+2*w}, v{R+2}")
        e(f"v_mul_f32 v{RAW+2*w}, s{sLog2e}, v{RAW+2*w}")
        e(f"v_exp_f32 v{RAW+2*w}, v{RAW+2*w}")
    e(f"v_readfirstlane_b32 s46, v{vT3}")
    e("s_waitcnt lgkmcnt(0)")
    e(f"v_mul_f32 v{R+3}, v{RAW}, v{RAW+1}")
    e(f"v_mul_f32 v{R}, v{RAW}, v{RAW+16}")
    e(f"v_mul_f32 v{R+1}, v{RAW}, v{RAW+17}")
    for w in range(1, 8):
        e(f"v_fmac_f32 v{R+3}, v{RAW+2*w}, v{RAW+2*w+1}")
        e(f"v_fmac_f32 v{R}, v{RAW+2*w}, v{RAW+16+2*w}")
        e(f"v_fmac_f32 v{R+1}, v{RAW+2*w}, v{RAW+17+2*w}")
    e("s_cmp_lg_u32 s46, 0")
    e("s_cbranch_scc1 L_final")
    e(f"v_lshlrev_b32 v{vT0}, 4, v0")
    e(f"s_lshl_b32 s{sTmp}, s2, 13")
    e(f"s_lshl_b32 s46, s{sW}, 10")
    e(f"s_add_u32 s{sTmp}, s{sTmp}, s46")
    e(f"buffer_store_dwordx4 v[{R}:{R+3}], v{vT0}, s[32:35], s{sTmp} offen sc0 sc1")
    e(f"v_mov_b32 v{vT1}, s70")
    e(f"s_cmp_lg_u32 s{sW}, 0")
    e("s_cbranch_scc1 L_w1")
    e(f"global_load_dword v{vT3}, v{vT1}, s[20:21] sc0 sc1")
    e.label("L_w1")
    e("s_waitcnt vmcnt(0)")
    e("s_barrier")
    e(f"s_cmp_lg_u32 s{sW}, 0")
    e("s_cbranch_scc1 L_wait")
    e(f"v_lshrrev_b32 v{vT3}, s47, v{vT3}")
    e(f"v_and_b32 v{vT3}, 0xffff, v{vT3}")
    e(f"v_readfirstlane_b32 s46, v{vT3}")
    e("s_nop 3")
    e("s_cmp_lg_u32 s46, 0")
    e("s_cbranch_scc1 L_have")
    e("s_lshl_b32 s39, 1, s47")
    e(f"v_mov_b32 v{vT2}, s39")
    e("s_mov_b64 exec, 1")
    e(f"global_atomic_add v{vT3}, v{vT1}, v{vT2}, s[20:21] sc0 sc1")
    e("s_mov_b64 exec, -1")
    e("s_waitcnt vmcnt(0)")
    e(f"v_lshrrev_b32 v{vT3}, s47, v{vT3}")
    e(f"v_and_b32 v{vT3}, 0xffff, v{vT3}")
    e.label("L_have")
    e(f"v_mov_b32 v{vT1}, {LDS_FLAG}")
    e("s_mov_b64 exec, 1")
    e(f"ds_write_b32 v{vT1}, v{vT3}")
    e("s_mov_b64 exec, -1")
    e("s_waitcnt lgkmcnt(0)")
    e.label("L_wait")
    e("s_barrier")
    e(f"v_mov_b32 v{vT1}, {LDS_FLAG}")
    e(f"ds_read_b32 v{vT3}, v{vT1}")
    e("s_waitcnt lgkmcnt(0)")
    e(f"v_readfirstlane_b32 s46, v{vT3}")
    e("s_nop 3")
    e("s_cmp_eq_u32 s46, 0")
    e("s_cbranch_scc1 L_fin")
    e(f"s_xor_b32 s{sTmp}, s{sTmp}, 8192")
    e(f"buffer_load_dwordx4 v[{X}:{X+3}], v{vT0}, s[32:35], s{sTmp} offen sc0 sc1")
    e.label("L_final")
    e("s_mov_b32 s32, s18\ns_mov_b32 s33, s19\ns_mov_b32 s34, 0x40000\ns_mov_b32 s35, 0x20000")
    e(f"s_lshr_b32 s{sTmp}, s2, 1")
    e(f"s_lshl_b32 s{sTmp}, s{sTmp}, 11")
    e(f"s_lshl_b32 s46, s{sW}, 8")
    e(f"s_add_u32 s{sTmp}, s{sTmp}, s46")
    e(f"v_lshlrev_b32 v{vT0}, 2, v0")
    e("s_waitcnt vmcnt(0)")
    e(f"v_max_f32 v{vT1}, v{R+2}, v{X+2}")
    e(f"v_sub_f32 v{R+2}, v{R+2}, v{vT1}")
    e(f"v_sub_f32 v{X+2}, v{X+2}, v{vT1}")
    e(f"v_mul_f32 v{R+2}, s{sLog2e}, v{R+2}")
    e(f"v_mul_f32 v{X+2}, s{sLog2e}, v{X+2}")
    e(f"v_exp_f32 v{R+2}, v{R+2}")
    e(f"v_exp_f32 v{X+2}, v{X+2}")
    e(f"v_mul_f32 v{R+3}, v{R+3}, v{R+2}")
    e(f"v_mul_f32 v{X+3}, v{X+3}, v{X+2}")
    e(f"v_add_f32 v{R+3}, v{R+3}, v{X+3}")
    e(f"v_rcp_f32 v{R+3}, v{R+3}")
    e(f"v_mul_f32 v{R}, v{R}, v{R+2}")
    e(f"v_mul_f32 v{R+1}, v{R+1}, v{R+2}")
    e(f"v_mul_f32 v{X}, v{X}, v{X+2}")
    e(f"v_mul_f32 v{X+1}, v{X+1}, v{X+2}")
    e(f"v_add_f32 v{R}, v{R}, v{X}")
    e(f"v_add_f32 v{R+1}, v{R+1}, v{X+1}")
    e(f"v_mul_f32 v{R}, v{R}, v{R+3}")
    e(f"v_mul_f32 v{R+1}, v{R+1}, v{R+3}")
    e(f"v_cvt_pk_bf16_f32 v{R}, v{R}, v{R+1}")
    e(f"buffer_store_dword v{R}, v{vT0}, s[32:35], s{sTmp} offen {OUTPOL}")
    e.label("L_fin")
    if stamp:
        e("s_memrealtime s[62:63]")
        e("s_getreg_b32 s46, hwreg(HW_REG_XCC_ID)")
        e("s_waitcnt lgkmcnt(0)")
        e(f"s_lshl_b32 s{sTmp}, s2, 3\ns_add_u32 s{sTmp}, s{sTmp}, s{sW}\ns_lshl_b32 s{sTmp}, s{sTmp}, 5\ns_add_u32 s{sTmp}, s{sTmp}, 0x400000")
        e(f"v_mov_b32 v8, s60\nv_mov_b32 v9, s72\nv_mov_b32 v10, s62\nv_mov_b32 v11, s46\nv_mov_b32 v2, s{sTmp}\nv_mov_b32 v12, s74")
        e("s_mov_b64 exec, 1")
        e("global_store_dwordx4 v2, v[8:11], s[22:23]")
        e("global_store_dword v2, v12, s[22:23] offset:16")
    e.label("L_end")
    e("s_endpgm")
    out = HEADER
    out += f"; @launch grid=(256,1,1) block=(512,1,1) lds={LDS_SIZE}\n"
    out += '.amdgcn_target "amdgcn-amd-amdhsa--gfx950"\n.text\n'
    out += f".globl {NAME}_kernel\n.p2align 8\n.type {NAME}_kernel,@function\n{NAME}_kernel:\n"
    out += e.text()
    out += f""".section .rodata,"a"
.p2align 6
.amdhsa_kernel {NAME}_kernel
  .amdhsa_next_free_vgpr 248
  .amdhsa_next_free_sgpr 80
  .amdhsa_accum_offset 248
  .amdhsa_group_segment_fixed_size 0
  .amdhsa_kernarg_size 80
  .amdhsa_user_sgpr_count 2
  .amdhsa_user_sgpr_kernarg_segment_ptr 1
  .amdhsa_system_sgpr_workgroup_id_x 1
.end_amdhsa_kernel
"""
    return out, LDS_SIZE
if __name__ == "__main__":
    o, lds = gen()
    open("cdna_kernels/" + NAME + ".s", "w").write(o)
    open("v4.s", "w").write(o)
    open("v4_def.s", "w").write(gen(SMALLPOL="")[0])
    open("v4_outdef.s", "w").write(gen(OUTPOL="")[0])
    open("v4_nopoll.s", "w").write(gen(POLL=False)[0])
    open("v4_p6.s", "w").write(gen(PROGB=6)[0])
    open("k_stamp.s", "w").write(gen(stamp=True)[0])
    print("lds", lds)
```

```python
import sys, struct
from emit import Emitter
NAME = "standalone__kv_cache_quant_int4_int2_kv_with_per_channel_or_per_token_scales__sampling"
def f32bits(x): return struct.unpack("<I", struct.pack("<f", x))[0]
LOG2E = 1.4426950408889634
SCALE = 128 ** -0.5
HEADER = open("cdna_kernels/" + NAME + ".s.ref").read().split("; Override launch")[0]

def gen(stamp=False, PROGB=10, REMAP=True, SMALLPOL="nt", OUTPOL="sc0 sc1", POLL=True, PSLEEP=1, FACB=12, ROTSH=1, ROTM=7):
    e = Emitter()
    W, NB, WIN = 8, 16, 4
    MB = 0x200000
    vK, vV, vKS, vVS = 1, 2, 3, 4
    vB = 8
    vQ = 16
    vM, vL, vT0, vT1, vT2, vT3 = 24, 25, 26, 27, 28, 29
    RAW = 32
    T = 96
    A = 128
    D = 144
    KS = 152
    S = 216
    P, BV, ACC = A, KS, KS + 32
    LDS_KT, LDS_VT, LDS_Q = 0, 8192, 16384
    LDS_O = 18432
    LDS_ST = LDS_O + 8 * 4096
    LDS_FLAG = LDS_ST + 512
    LDS_P9 = LDS_FLAG + 64
    LDS_SIZE = LDS_P9 + 8192
    sW, sOffK, sOffV, sTmp = 3, 36, 37, 38
    sMaskN8, sMaskHi = 40, 42
    sLog2e, sScale = 44, 45
    e("s_load_dwordx16 s[4:19], s[0:1], 0")
    e("s_load_dwordx4 s[20:23], s[0:1], 64")
    e(f"s_cmp_ge_u32 s2, 256")
    e("s_cbranch_scc1 L_end")
    if stamp: e("s_memrealtime s[60:61]")
    e("v_lshrrev_b32 v1, 6, v0")
    e("v_and_b32 v0, 63, v0")
    e(f"v_readfirstlane_b32 s{sW}, v1")
    e(f"s_lshr_b32 s67, s2, {ROTSH}")
    e(f"s_and_b32 s67, s67, {ROTM}")
    e("s_lshl_b32 s67, s67, 16")
    if REMAP:
        e("s_lshr_b32 s46, s2, 3")
        e("s_and_b32 s46, s46, 3")
        e("s_lshl_b32 s46, s46, 1")
        e("s_xor_b32 s2, s2, s46")
    e(f"v_bfe_u32 v{vT2}, v0, 1, 3")
    e(f"v_lshrrev_b32 v{vT0}, 4, v0")
    e(f"v_lshlrev_b32 v{vK}, 9, v{vT2}")
    e(f"v_lshl_add_u32 v{vK}, v{vT0}, 5, v{vK}")
    e(f"v_and_b32 v{vT2}, 1, v0")
    e(f"v_lshl_add_u32 v{vK}, v{vT2}, 4, v{vK}")
    e(f"v_lshlrev_b32 v{vT3}, 4, v0")
    e(f"s_lshl_b32 s69, s2, 19")
    e(f"s_lshl_b32 s{sTmp}, s{sW}, 12")
    e(f"s_add_u32 s69, s69, s{sTmp}")
    e("s_mov_b32 s26, 0x8000000\ns_mov_b32 s27, 0x20000")
    e(f"s_mov_b32 s{sOffV}, s67")
    e(f"s_add_u32 s{sOffK}, s69, s67")
    e(f"s_and_b32 s46, s{sW}, 1")
    e("s_lshl_b32 s46, s46, 10")
    e("s_lshl_b32 s47, s2, 11")
    e("s_add_u32 s47, s47, s46")
    e("s_lshr_b32 s39, s2, 1")
    e("s_lshl_b32 s39, s39, 11")
    e("s_add_u32 s39, s39, s46")
    e("s_mov_b32 s34, 0x80000\ns_mov_b32 s35, 0x20000")
    e("s_mov_b32 s50, 0x80000\ns_mov_b32 s51, 0x20000")
    e("s_mov_b32 s54, 0x40000\ns_mov_b32 s55, 0x20000")
    e(f"s_cmp_lt_u32 s{sW}, 2")
    e("s_waitcnt lgkmcnt(0)")
    e("s_cselect_b32 s32, s10, s14\ns_cselect_b32 s33, s11, s15")
    e("s_cselect_b32 s48, s12, s16\ns_cselect_b32 s49, s13, s17")
    e("s_mov_b32 s52, s4\ns_mov_b32 s53, s5")
    e("s_mov_b32 s24, s6\ns_mov_b32 s25, s7")
    e("s_lshl_b32 s68, s2, 8")
    e(f"s_add_u32 s68, s68, {MB}")
    e(f"s_cmp_lt_u32 s{sW}, 2")
    e("s_cbranch_scc0 L_noq")
    e(f"buffer_load_dwordx4 v[{T+8}:{T+11}], v{vT3}, s[52:55], s39 offen {SMALLPOL}")
    e(f"v_mov_b32 v{T+12}, s68")
    e(f"v_mov_b32 v{T+13}, 0")
    e("s_mov_b64 exec, 1")
    e(f"global_store_dword v{T+12}, v{T+13}, s[22:23] sc0 sc1")
    e("s_mov_b64 exec, -1")
    e.label("L_noq")
    e(f"s_cmp_lt_u32 s{sW}, 4")
    e("s_cbranch_scc0 L_nosc")
    e(f"buffer_load_dwordx4 v[{T}:{T+3}], v{vT3}, s[32:35], s47 offen {SMALLPOL}")
    e(f"buffer_load_dwordx4 v[{T+4}:{T+7}], v{vT3}, s[48:51], s47 offen {SMALLPOL}")
    e.label("L_nosc")
    def issue(idx):
        slot = idx % WIN
        r = RAW + slot * 16
        if idx < 2 * NB:
            for i in range(4):
                if idx < NB:
                    e(f"buffer_load_dwordx4 v[{r+4*i}:{r+4*i+3}], v{vK}, s[24:27], s{sOffK} offen offset:{i*128} nt")
                else:
                    e(f"buffer_load_dwordx4 v[{r+4*i}:{r+4*i+3}], v{vV}, s[28:31], s{sOffK} offen offset:{i*256} nt")
            if idx + 1 < 2 * NB:
                e(f"s_add_u32 s{sOffV}, s{sOffV}, {W*4096}")
                e(f"s_and_b32 s{sOffV}, s{sOffV}, 0x7ffff")
                e(f"s_add_u32 s{sOffK}, s69, s{sOffV}")
    for b in range(WIN): issue(b)
    e("s_mov_b32 s28, s8\ns_mov_b32 s29, s9\ns_mov_b32 s30, 0x8000000\ns_mov_b32 s31, 0x20000")
    e(f"v_and_b32 v{vT1}, 15, v0")
    e(f"v_lshl_add_u32 v{vKS}, v{vT0}, 1, v{vT2}")
    e(f"v_lshlrev_b32 v{vKS}, 5, v{vKS}")
    e(f"v_lshlrev_b32 v{vV}, 10, v{vT0}")
    e(f"v_lshl_add_u32 v{vV}, v{vT1}, 4, v{vV}")
    e(f"s_lshl_b32 s{sTmp}, s{sW}, 6")
    e(f"v_lshlrev_b32 v{vVS}, 4, v{vT0}")
    e(f"v_add_u32 v{vVS}, s{sTmp}, v{vVS}")
    e(f"v_and_b32 v{vL}, 7, v0")
    e(f"v_lshlrev_b32 v{vL}, 8, v{vL}")
    e(f"v_lshrrev_b32 v{vT1}, 3, v{vT1}")
    e(f"v_lshl_add_u32 v{vT1}, v{vT0}, 1, v{vT1}")
    e(f"v_lshl_add_u32 v{vL}, v{vT1}, 3, v{vL}")
    e(f"s_mov_b32 s{sMaskN8}, 0xff00ff00")
    e(f"s_mov_b32 s{sMaskN8+1}, 0xff00ff00")
    e(f"s_mov_b32 s{sMaskHi}, 0")
    e(f"s_mov_b32 s{sMaskHi+1}, -1")
    e(f"s_mov_b32 s{sLog2e}, {f32bits(LOG2E):#x}")
    e(f"s_mov_b32 s{sScale}, {f32bits(SCALE):#x}")
    e(f"v_mov_b32 v{vM}, 0xff800000")
    e(f"s_cmp_lt_u32 s{sW}, 4")
    e("s_cbranch_scc0 L_notab")
    e(f"s_lshl_b32 s{sTmp}, s{sW}, 12")
    e(f"v_lshlrev_b32 v{vT1}, 6, v0")
    e(f"v_add_u32 v{vT1}, s{sTmp}, v{vT1}")
    e(f"v_mov_b32 v{T+28}, 0")
    e(f"v_mov_b32 v{T+29}, 0")
    e(f"v_mov_b32 v{T+30}, 0")
    e(f"v_mov_b32 v{T+31}, 0")
    e(f"v_mov_b32 v{vT2}, {LDS_FLAG}")
    e(f"ds_write_b128 v{vT2}, v[{T+28}:{T+31}]")
    e(f"ds_write_b128 v{vT2}, v[{T+28}:{T+31}] offset:16")
    e(f"s_waitcnt vmcnt({4*WIN})")
    for k in range(4):
        o = T + 12 + 4 * k
        e(f"v_lshlrev_b32 v{o}, 16, v{T+k}")
        e(f"v_and_b32 v{o+1}, 0xffff0000, v{T+k}")
        e(f"v_lshlrev_b32 v{o+2}, 16, v{T+4+k}")
        e(f"v_and_b32 v{o+3}, 0xffff0000, v{T+4+k}")
        e(f"v_mul_f32 v{o+2}, -v{o+2}, v{o}")
        e(f"v_mul_f32 v{o+3}, -v{o+3}, v{o+1}")
        e(f"ds_write_b128 v{vT1}, v[{o}:{o+3}] offset:{16*k}")
    e(f"s_cmp_lt_u32 s{sW}, 2")
    e("s_cbranch_scc0 L_notab")
    e(f"s_lshl_b32 s{sTmp}, s{sW}, 10")
    e(f"v_add_u32 v{vT3}, s{sTmp}, v{vT3}")
    e(f"ds_write_b128 v{vT3}, v[{T+8}:{T+11}] offset:{LDS_Q}")
    e.label("L_notab")
    e("s_waitcnt lgkmcnt(0)")
    e("s_barrier")
    for i in range(4):
        e(f"ds_read_b64 v[{vQ+2*i}:{vQ+2*i+1}], v{vL} offset:{LDS_Q+i*64}")
    def ksread(g):
        base = KS + (g & 1) * 32
        e(f"s_lshr_b32 s46, s67, 6")
        e(f"s_add_u32 s46, s46, {g*1024}")
        e(f"s_and_b32 s46, s46, 0x1fff")
        e(f"v_add_u32 v5, s46, v{vKS}")
        for i in range(4):
            e(f"ds_read_b128 v[{base+8*i}:{base+8*i+3}], v5 offset:{LDS_KT+i*256}")
            e(f"ds_read_b128 v[{base+8*i+4}:{base+8*i+7}], v5 offset:{LDS_KT+i*256+16}")
    ksread(0)
    def post(b):
        d = D + (b & 1) * 4
        sa, sb = S + 2 * b, S + 2 * b + 1
        e(f"v_cndmask_b32 v{sa}, v{d}, v{d+1}, s[{sMaskN8}:{sMaskN8+1}]")
        e(f"v_cndmask_b32 v{sb}, v{d+2}, v{d+3}, s[{sMaskN8}:{sMaskN8+1}]")
        e(f"v_add_f32_dpp v{sa}, v{sa}, v{sa} row_ror:8 row_mask:0xf bank_mask:0xf")
        e(f"v_add_f32_dpp v{sb}, v{sb}, v{sb} row_ror:8 row_mask:0xf bank_mask:0xf")
        e(f"v_cvt_pk_bf16_f32 v{vT0}, v{sa}, v{sb}")
        e(f"v_lshlrev_b32 v{sa}, 16, v{vT0}")
        e(f"v_and_b32 v{sb}, 0xffff0000, v{vT0}")
        e(f"v_mul_f32 v{sa}, s{sScale}, v{sa}")
        e(f"v_mul_f32 v{sb}, s{sScale}, v{sb}")
        e(f"v_cvt_pk_bf16_f32 v{vT0}, v{sa}, v{sb}")
        e(f"v_lshlrev_b32 v{sa}, 16, v{vT0}")
        e(f"v_and_b32 v{sb}, 0xffff0000, v{vT0}")
        e(f"v_max3_f32 v{vM}, v{vM}, v{sa}, v{sb}")
    for b in range(NB):
        r = RAW + (b % WIN) * 16
        t = T + (b & 1) * 16
        a = A + (b & 1) * 8
        d = D + (b & 1) * 4
        g = b >> 1
        ks = KS + (g & 1) * 32
        e(f"s_waitcnt vmcnt({4*(WIN-1)})")
        for k in range(16):
            e(f"v_cvt_f32_i32 v{t+k}, v{r+k}")
        issue(b + WIN)
        if b % 2 == 0:
            e("s_waitcnt lgkmcnt(0)")
        for i in range(4):
            for hh in range(2):
                x = t + 4 * i + 2 * hh
                y = ks + 8 * i + 4 * hh
                e(f"v_pk_fma_f32 v[{x}:{x+1}], v[{x}:{x+1}], v[{y}:{y+1}], v[{y+2}:{y+3}]")
        if b % 2 == 0 and g + 1 < 8:
            ksread(g + 1)
        for k in range(8):
            e(f"v_cvt_pk_bf16_f32 v{a+k}, v{t+2*k}, v{t+2*k+1}")
        e(f"v_mfma_f32_16x16x32_bf16 v[{d}:{d+3}], v[{a}:{a+3}], v[{vQ}:{vQ+3}], 0")
        e(f"v_mfma_f32_16x16x32_bf16 v[{d}:{d+3}], v[{a+4}:{a+7}], v[{vQ+4}:{vQ+7}], v[{d}:{d+3}]")
        if b > 0: post(b - 1)
    post(NB - 1)
    if stamp: e("s_memrealtime s[74:75]")
    def vsread(b):
        bb = vB + (b & 1) * 4
        e(f"s_lshr_b32 s46, s67, 6")
        e(f"s_add_u32 s46, s46, {b*512}")
        e(f"s_and_b32 s46, s46, 0x1fff")
        e(f"v_add_u32 v{vK}, s46, v{vVS}")
        e(f"ds_read_b128 v[{bb}:{bb+3}], v{vK} offset:{LDS_VT}")
    vsread(0)
    def xlane(reg, op):
        e(f"v_mov_b32 v{vT0}, v{reg}")
        e(f"v_permlane32_swap_b32 v{reg}, v{vT0}")
        e(f"{op} v{reg}, v{reg}, v{vT0}")
        e(f"v_mov_b32 v{vT0}, v{reg}")
        e(f"v_permlane16_swap_b32 v{reg}, v{vT0}")
        e(f"{op} v{reg}, v{reg}, v{vT0}")
    xlane(vM, "v_max_f32")
    e(f"v_mul_f32 v{vT1}, s{sLog2e}, v{vM}")
    e(f"v_sub_f32 v{vT1}, 0, v{vT1}")
    for k in range(32):
        e(f"v_fma_f32 v{S+k}, v{S+k}, s{sLog2e}, v{vT1}")
    for k in range(32):
        e(f"v_exp_f32 v{S+k}, v{S+k}")
    for b in range(NB):
        e(f"v_cvt_pk_bf16_f32 v{P+b}, v{S+2*b}, v{S+2*b+1}")
    e(f"v_add_f32 v{vL}, v{S}, v{S+1}")
    e(f"v_add_f32 v{vT2}, v{S+2}, v{S+3}")
    for k in range(4, 32, 2):
        e(f"v_add_f32 v{vL}, v{vL}, v{S+k}")
        e(f"v_add_f32 v{vT2}, v{vT2}, v{S+k+1}")
    e(f"v_add_f32 v{vL}, v{vL}, v{vT2}")
    xlane(vL, "v_add_f32")
    vOW, vOR, vP9, vL16, vL4, vFL = 5, 6, 7, 30, 31, 3
    ST, F = S, S + 16
    R = S + 24
    X = S + 28
    e(f"v_and_b32 v{vT2}, 7, v0")
    e(f"v_lshlrev_b32 v{vT2}, 6, v{vT2}")
    e(f"s_lshl_b32 s{sTmp}, s{sW}, 3")
    e(f"v_add_u32 v{vT2}, s{sTmp}, v{vT2}")
    e(f"ds_write_b64 v{vT2}, v[{vM}:{vL}] offset:{LDS_ST}")
    e(f"v_mov_b32 v{vFL}, {LDS_FLAG}")
    e(f"v_mov_b32 v{vM}, 1")
    e("s_mov_b64 exec, 1")
    e(f"ds_add_u32 v{vFL}, v{vM} offset:16")
    e("s_mov_b64 exec, -1")
    e(f"v_lshrrev_b32 v{vT0}, 4, v0")
    e(f"v_and_b32 v{vOW}, 1, v{vT0}")
    e(f"v_lshlrev_b32 v{vOW}, 11, v{vOW}")
    e(f"v_lshrrev_b32 v{vT0}, 1, v{vT0}")
    e(f"v_lshl_add_u32 v{vOW}, v{vT0}, 8, v{vOW}")
    e(f"v_and_b32 v{vT0}, 15, v0")
    e(f"v_lshl_add_u32 v{vOW}, v{vT0}, 4, v{vOW}")
    e(f"s_lshl_b32 s{sTmp}, s{sW}, 12")
    e(f"v_add_u32 v{vOW}, s{sTmp}, v{vOW}")
    e(f"s_lshl_b32 s{sTmp}, s{sW}, 9")
    e(f"v_lshlrev_b32 v{vOR}, 3, v0")
    e(f"v_add_u32 v{vOR}, s{sTmp}, v{vOR}")
    e(f"v_lshlrev_b32 v{vL16}, 4, v0")
    e(f"s_lshl_b32 s{sTmp}, s{sW}, 10")
    e(f"v_add_u32 v{vP9}, s{sTmp}, v{vL16}")
    e(f"v_lshlrev_b32 v{vL4}, 2, v0")
    e(f"s_lshl_b32 s64, s2, 13")
    e(f"s_add_u32 s64, s64, s{sTmp}")
    e("s_lshr_b32 s46, s2, 1")
    e("s_lshl_b32 s65, s46, 11")
    e(f"s_lshl_b32 s{sTmp}, s{sW}, 8")
    e(f"s_add_u32 s65, s65, s{sTmp}")
    e("s_and_b32 s47, s46, 1")
    e("s_lshl_b32 s47, s47, 4")
    e("s_lshr_b32 s46, s46, 1")
    e("s_lshl_b32 s70, s46, 2")
    e("s_mov_b32 s32, s22\ns_mov_b32 s33, s23\ns_mov_b32 s34, 0x200000\ns_mov_b32 s35, 0x20000")
    e("s_mov_b32 s56, s18\ns_mov_b32 s57, s19\ns_mov_b32 s58, 0x40000\ns_mov_b32 s59, 0x20000")
    e(f"s_lshl_b32 s{sTmp}, s{sW}, 6")
    e(f"v_mov_b32 v{vL}, s{sTmp}")
    e("s_mov_b32 s66, 0")
    def factors():
        for k in range(4):
            e(f"ds_read_b128 v[{ST+4*k}:{ST+4*k+3}], v{vL} offset:{LDS_ST+16*k}")
        e("s_waitcnt lgkmcnt(0)")
        e(f"v_max3_f32 v{R+2}, v{ST}, v{ST+2}, v{ST+4}")
        e(f"v_max3_f32 v{R+2}, v{R+2}, v{ST+6}, v{ST+8}")
        e(f"v_max3_f32 v{R+2}, v{R+2}, v{ST+10}, v{ST+12}")
        e(f"v_max_f32 v{R+2}, v{R+2}, v{ST+14}")
        for w in range(8):
            e(f"v_sub_f32 v{F+w}, v{ST+2*w}, v{R+2}")
            e(f"v_mul_f32 v{F+w}, s{sLog2e}, v{F+w}")
            e(f"v_exp_f32 v{F+w}, v{F+w}")
        e(f"v_mul_f32 v{R+3}, v{F}, v{ST+1}")
        for w in range(1, 8):
            e(f"v_fmac_f32 v{R+3}, v{F+w}, v{ST+2*w+1}")
        e("s_mov_b32 s66, 1")
    for b in range(NB):
        idx = NB + b
        r = RAW + (idx % WIN) * 16
        t = T + (b & 1) * 16
        bb = vB + (b & 1) * 4
        j = b & 3
        if b == PROGB and POLL:
            e("s_mov_b64 exec, 1")
            e(f"ds_add_u32 v{vFL}, v{vM} offset:8")
            e("s_mov_b64 exec, -1")
        if b == FACB:
            e(f"ds_read_b32 v{vT2}, v{vFL} offset:16")
            e("s_waitcnt lgkmcnt(0)")
            e(f"v_readfirstlane_b32 s46, v{vT2}")
            e("s_nop 3")
            e("s_cmp_lg_u32 s46, 8")
            e("s_cbranch_scc1 L_nofac")
            factors()
            e.label("L_nofac")
        rem = min(WIN - 1, NB - 1 - b)
        e(f"s_waitcnt vmcnt({4*rem})")
        for k in range(16):
            e(f"v_cvt_f32_i32 v{t+k}, v{r+k}")
        issue(idx + WIN)
        e("s_waitcnt lgkmcnt(0)")
        if b + 1 < NB: vsread(b + 1)
        for ab in range(2):
            for k in range(4):
                x = t + ab * 8 + 2 * k
                e(f"v_pk_fma_f32 v[{x}:{x+1}], v[{x}:{x+1}], v[{bb}:{bb+1}], v[{bb+2}:{bb+3}] op_sel:[0,{ab},{ab}] op_sel_hi:[1,{ab},{ab}]")
        for h in range(2):
            for jj in range(4):
                e(f"v_cvt_pk_bf16_f32 v{BV+(h*4+jj)*4+j}, v{t+h*4+jj}, v{t+8+h*4+jj}")
        if j == 3:
            p = P + (b - 3)
            for m in range(8):
                c = "0" if b == 3 else f"v[{ACC+4*m}:{ACC+4*m+3}]"
                e(f"v_mfma_f32_16x16x32_bf16 v[{ACC+4*m}:{ACC+4*m+3}], v[{p}:{p+3}], v[{BV+4*m}:{BV+4*m+3}], {c}")
    if stamp: e("s_memrealtime s[72:73]")
    for r in range(4):
        for jj in range(4):
            e(f"v_cndmask_b32 v{T+4*r+jj}, v{ACC+4*jj+r}, v{ACC+16+4*jj+r}, s[{sMaskHi}:{sMaskHi+1}]")
        e(f"ds_write_b128 v{vOW}, v[{T+4*r}:{T+4*r+3}] offset:{LDS_O+r*512}")
    e("s_mov_b64 exec, 1")
    e(f"ds_add_u32 v{vFL}, v{vM} offset:4")
    e("s_mov_b64 exec, -1")
    e("s_cmp_lg_u32 s66, 0")
    e("s_cbranch_scc1 L_facok")
    e.label("L_spin")
    e(f"ds_read_b32 v{vT2}, v{vFL} offset:16")
    e("s_waitcnt lgkmcnt(0)")
    e(f"v_readfirstlane_b32 s46, v{vT2}")
    e("s_nop 3")
    e("s_cmp_eq_u32 s46, 8")
    e("s_cbranch_scc1 L_dofac")
    e("s_sleep 8")
    e("s_branch L_spin")
    e.label("L_dofac")
    factors()
    e.label("L_facok")
    if POLL:
        e(f"s_cmp_lg_u32 s{sW}, 0")
        e("s_cbranch_scc1 L_bar2")
        e(f"v_mov_b32 v{vT1}, s68")
        e.label("L_poll")
        e(f"ds_read_b64 v[{vT2}:{vT3}], v{vFL} offset:4")
        e("s_waitcnt lgkmcnt(0)")
        e(f"v_readfirstlane_b32 s46, v{vT2}")
        e(f"v_readfirstlane_b32 s39, v{vT3}")
        e("s_nop 3")
        e("s_cmp_eq_u32 s46, 8")
        e("s_cbranch_scc1 L_bar2")
        e("s_cmp_eq_u32 s39, 8")
        e("s_cbranch_scc1 L_gpoll")
        e("s_sleep 8")
        e("s_branch L_poll")
        e.label("L_gpoll")
        e(f"global_load_dword v{vT2}, v{vT1}, s[22:23] sc0 sc1")
        e("s_waitcnt vmcnt(0)")
        e(f"v_readfirstlane_b32 s46, v{vT2}")
        e("s_nop 3")
        e("s_cmp_lg_u32 s46, 0")
        e("s_cbranch_scc1 L_fetch")
        if PSLEEP: e(f"s_sleep {PSLEEP}")
        e("s_branch L_poll")
        e.label("L_fetch")
        e(f"s_xor_b32 s{sTmp}, s64, 8192")
        e(f"s_add_u32 s46, s{sTmp}, 4096")
        for w in range(8):
            e(f"buffer_load_dwordx4 v[{RAW+4*w}:{RAW+4*w+3}], v{vL16}, s[32:35], s{sTmp if w < 4 else 46} offen offset:{(w&3)*1024} sc0 sc1")
        for w in range(8):
            e(f"s_waitcnt vmcnt({7-w})")
            e(f"ds_write_b128 v{vL16}, v[{RAW+4*w}:{RAW+4*w+3}] offset:{LDS_P9+w*1024}")
        e(f"ds_write_b32 v{vFL}, v{vM} offset:12")
    e.label("L_bar2")
    e("s_waitcnt lgkmcnt(0)")
    e("s_barrier")
    for w in range(8):
        e(f"ds_read_b64 v[{RAW+2*w}:{RAW+2*w+1}], v{vOR} offset:{LDS_O+w*4096}")
    e(f"ds_read_b32 v{vT3}, v{vFL} offset:12")
    e(f"ds_read_b128 v[{X}:{X+3}], v{vP9} offset:{LDS_P9}")
    e("s_waitcnt lgkmcnt(8)")
    e(f"v_mul_f32 v{R}, v{F}, v{RAW}")
    e(f"v_mul_f32 v{R+1}, v{F}, v{RAW+1}")
    e(f"v_fmac_f32 v{R}, v{F+1}, v{RAW+2}")
    e(f"v_fmac_f32 v{R+1}, v{F+1}, v{RAW+3}")
    e("s_waitcnt lgkmcnt(2)")
    for w in range(2, 8):
        e(f"v_fmac_f32 v{R}, v{F+w}, v{RAW+2*w}")
        e(f"v_fmac_f32 v{R+1}, v{F+w}, v{RAW+2*w+1}")
    e("s_waitcnt lgkmcnt(0)")
    e(f"v_readfirstlane_b32 s46, v{vT3}")
    e("s_nop 3")
    e("s_cmp_lg_u32 s46, 0")
    e("s_cbranch_scc1 L_final")
    e(f"buffer_store_dwordx4 v[{R}:{R+3}], v{vL16}, s[32:35], s64 offen sc0 sc1")
    e(f"v_mov_b32 v{vT1}, s68")
    e(f"s_cmp_lg_u32 s{sW}, 0")
    e("s_cbranch_scc1 L_w1")
    e(f"global_load_dword v{vT3}, v{vT1}, s[22:23] sc0 sc1")
    e.label("L_w1")
    e("s_waitcnt vmcnt(0)")
    e("s_barrier")
    e(f"s_cmp_lg_u32 s{sW}, 0")
    e("s_cbranch_scc1 L_wait")
    e(f"v_readfirstlane_b32 s46, v{vT3}")
    e("s_nop 3")
    e("s_cmp_lg_u32 s46, 0")
    e("s_cbranch_scc1 L_have")
    e("s_lshl_b32 s39, 1, s47")
    e(f"v_mov_b32 v{vT2}, s39")
    e(f"v_mov_b32 v{vL}, s70")
    e(f"v_xor_b32 v{vT1}, 256, v{vT1}")
    e("s_mov_b64 exec, 1")
    e(f"global_store_dword v{vT1}, v{vM}, s[22:23] sc0 sc1")
    e(f"global_atomic_add v{vT3}, v{vL}, v{vT2}, s[20:21] sc0 sc1")
    e("s_mov_b64 exec, -1")
    e("s_waitcnt vmcnt(0)")
    e(f"v_lshrrev_b32 v{vT3}, s47, v{vT3}")
    e(f"v_and_b32 v{vT3}, 0xffff, v{vT3}")
    e.label("L_have")
    e("s_mov_b64 exec, 1")
    e(f"ds_write_b32 v{vFL}, v{vT3}")
    e("s_mov_b64 exec, -1")
    e("s_waitcnt lgkmcnt(0)")
    e.label("L_wait")
    e("s_barrier")
    e(f"ds_read_b32 v{vT3}, v{vFL}")
    e("s_waitcnt lgkmcnt(0)")
    e(f"v_readfirstlane_b32 s46, v{vT3}")
    e("s_nop 3")
    e("s_cmp_eq_u32 s46, 0")
    e("s_cbranch_scc1 L_fin")
    e(f"s_xor_b32 s{sTmp}, s64, 8192")
    e(f"buffer_load_dwordx4 v[{X}:{X+3}], v{vL16}, s[32:35], s{sTmp} offen sc0 sc1")
    e("s_waitcnt vmcnt(0)")
    e.label("L_final")
    e(f"v_max_f32 v{vT1}, v{R+2}, v{X+2}")
    e(f"v_sub_f32 v{R+2}, v{R+2}, v{vT1}")
    e(f"v_sub_f32 v{X+2}, v{X+2}, v{vT1}")
    e(f"v_mul_f32 v{R+2}, s{sLog2e}, v{R+2}")
    e(f"v_mul_f32 v{X+2}, s{sLog2e}, v{X+2}")
    e(f"v_exp_f32 v{R+2}, v{R+2}")
    e(f"v_exp_f32 v{X+2}, v{X+2}")
    e(f"v_mul_f32 v{R+3}, v{R+3}, v{R+2}")
    e(f"v_mul_f32 v{X+3}, v{X+3}, v{X+2}")
    e(f"v_add_f32 v{R+3}, v{R+3}, v{X+3}")
    e(f"v_rcp_f32 v{R+3}, v{R+3}")
    e(f"v_mul_f32 v{R}, v{R}, v{R+2}")
    e(f"v_mul_f32 v{R+1}, v{R+1}, v{R+2}")
    e(f"v_mul_f32 v{X}, v{X}, v{X+2}")
    e(f"v_mul_f32 v{X+1}, v{X+1}, v{X+2}")
    e(f"v_add_f32 v{R}, v{R}, v{X}")
    e(f"v_add_f32 v{R+1}, v{R+1}, v{X+1}")
    e(f"v_mul_f32 v{R}, v{R}, v{R+3}")
    e(f"v_mul_f32 v{R+1}, v{R+1}, v{R+3}")
    e(f"v_cvt_pk_bf16_f32 v{R}, v{R}, v{R+1}")
    e(f"buffer_store_dword v{R}, v{vL4}, s[56:59], s65 offen {OUTPOL}")
    e.label("L_fin")
    if stamp:
        e("s_memrealtime s[62:63]")
        e("s_getreg_b32 s46, hwreg(HW_REG_XCC_ID)")
        e("s_waitcnt lgkmcnt(0)")
        e(f"s_lshl_b32 s{sTmp}, s2, 3\ns_add_u32 s{sTmp}, s{sTmp}, s{sW}\ns_lshl_b32 s{sTmp}, s{sTmp}, 5\ns_add_u32 s{sTmp}, s{sTmp}, 0x400000")
        e(f"v_mov_b32 v8, s60\nv_mov_b32 v9, s72\nv_mov_b32 v10, s62\nv_mov_b32 v11, s46\nv_mov_b32 v2, s{sTmp}\nv_mov_b32 v12, s74")
        e("s_mov_b64 exec, 1")
        e("global_store_dwordx4 v2, v[8:11], s[22:23]")
        e("global_store_dword v2, v12, s[22:23] offset:16")
    e.label("L_end")
    e("s_endpgm")
    out = HEADER
    out += f"; @launch grid=(256,1,1) block=(512,1,1) lds={LDS_SIZE}\n"
    out += '.amdgcn_target "amdgcn-amd-amdhsa--gfx950"\n.text\n'
    out += f".globl {NAME}_kernel\n.p2align 8\n.type {NAME}_kernel,@function\n{NAME}_kernel:\n"
    out += e.text()
    out += f""".section .rodata,"a"
.p2align 6
.amdhsa_kernel {NAME}_kernel
  .amdhsa_next_free_vgpr 248
  .amdhsa_next_free_sgpr 80
  .amdhsa_accum_offset 248
  .amdhsa_group_segment_fixed_size 0
  .amdhsa_kernarg_size 80
  .amdhsa_user_sgpr_count 2
  .amdhsa_user_sgpr_kernarg_segment_ptr 1
  .amdhsa_system_sgpr_workgroup_id_x 1
.end_amdhsa_kernel
"""
    return out, LDS_SIZE
if __name__ == "__main__":
    o, lds = gen()
    open("v8.s", "w").write(o)
    open("v8_r07.s", "w").write(gen(ROTSH=0)[0])
    open("v8_r0.s", "w").write(gen(ROTM=0)[0])
    open("k_stamp.s", "w").write(gen(stamp=True)[0])
    print("lds", lds)
```
